```python
import torch

def _softmax(x, axis=-1):
    return torch.softmax(x, dim=axis)
def _gelu(x):
    return torch.nn.functional.gelu(x, approximate="tanh")
def _silu(x):
    return torch.nn.functional.silu(x)
def _sigmoid(x):
    return torch.sigmoid(x)
def _layernorm(x, axis=-1, eps=1e-5):
    m = x.mean(dim=axis, keepdim=True)
    v = x.var(dim=axis, keepdim=True, unbiased=False)
    return (x - m) / torch.sqrt(v + eps)
def _scatter_add(tgt, idx, src, axis=0):
    return tgt.clone().index_add_(axis, idx, src)
def _segment_sum(src, seg, n):
    out = torch.zeros((n,) + src.shape[1:], dtype=src.dtype)
    return out.index_add_(0, seg, src)
def _pad(x, pw):
    flat = tuple(v for pair in reversed(pw) for v in pair)
    return torch.nn.functional.pad(x, flat)

kernel_name = 'parallel_sum__ssm_conv_s5__geglu_ffn__prompt'

def setup_inputs():

    _w = (lambda a: (lambda t: t.to(torch.bfloat16) if t.is_floating_point() else t)(torch.as_tensor(a)))
    def _A_setup():
        B, S, D = 1, 2048, 640
        P = D
        Lambda_re = -0.5 * (lambda _x: torch.exp(torch.as_tensor(_x)))((lambda *s: torch.randn(*s, dtype=torch.bfloat16) * 0.8)(P))
        Lambda_im = (lambda *s: torch.randn(*s, dtype=torch.bfloat16) * 0.8)(P) * 1.0
        B_re = (lambda *s: torch.randn(*s, dtype=torch.bfloat16) * 0.8)(P, D) * (D ** -0.5)
        B_im = (lambda *s: torch.randn(*s, dtype=torch.bfloat16) * 0.8)(P, D) * (D ** -0.5)
        C_re = (lambda *s: torch.randn(*s, dtype=torch.bfloat16) * 0.8)(D, P) * (P ** -0.5)
        C_im = (lambda *s: torch.randn(*s, dtype=torch.bfloat16) * 0.8)(D, P) * (P ** -0.5)
        log_dt = (lambda *s: torch.randn(*s, dtype=torch.bfloat16) * 0.8)(P) * 0.3 - 2.0
        Dskip = (lambda *s: torch.randn(*s, dtype=torch.bfloat16) * 0.8)(D)
        return {
            "x": _w((lambda *s: torch.randn(*s, dtype=torch.bfloat16) * 0.05)(B, S, D)),
            "Lambda_re": _w(Lambda_re),
            "Lambda_im": _w(Lambda_im),
            "B_re": _w(B_re),
            "B_im": _w(B_im),
            "C_re": _w(C_re),
            "C_im": _w(C_im),
            "log_dt": _w(log_dt),
            "Dskip": _w(Dskip),
        }
    _A_in = _A_setup()

    def _B_setup():
        B, S, D, F = 1, 2048, 640, 1536
        return {
            "x": _w((lambda *s: torch.randn(*s, dtype=torch.bfloat16) * 0.05)(B, S, D)),
            "w_gate": _w((lambda *s: torch.randn(*s, dtype=torch.bfloat16) * 0.05)(D, F)),
            "w_up": _w((lambda *s: torch.randn(*s, dtype=torch.bfloat16) * 0.05)(D, F)),
            "w_down": _w((lambda *s: torch.randn(*s, dtype=torch.bfloat16) * 0.05)(F, D)),
        }
    _B_in = _B_setup()

    return {
        "A_x": _A_in["x"],
        "A_Lambda_re": _A_in["Lambda_re"],
        "A_Lambda_im": _A_in["Lambda_im"],
        "A_B_re": _A_in["B_re"],
        "A_B_im": _A_in["B_im"],
        "A_C_re": _A_in["C_re"],
        "A_C_im": _A_in["C_im"],
        "A_log_dt": _A_in["log_dt"],
        "A_Dskip": _A_in["Dskip"],
        "B_x": _B_in["x"],
        "B_w_gate": _B_in["w_gate"],
        "B_w_up": _B_in["w_up"],
        "B_w_down": _B_in["w_down"],
    }

def reference(A_x, A_Lambda_re, A_Lambda_im, A_B_re, A_B_im, A_C_re, A_C_im, A_log_dt, A_Dskip, B_x, B_w_gate, B_w_up, B_w_down):
    def _A_ref(x, Lambda_re, Lambda_im, B_re, B_im, C_re, C_im, log_dt, Dskip):
        Bsz, L, H = x.shape
        Lam = Lambda_re + 1j * Lambda_im
        Bmat = B_re + 1j * B_im
        Cmat = C_re + 1j * C_im
        dt = torch.exp(log_dt)
        Lam_bar = torch.exp(dt * Lam)
        B_bar = ((Lam_bar - 1.0) / Lam)[:, None] * Bmat
        Bu = torch.einsum("bld,pd->blp", x + 0j, B_bar)
        h = torch.zeros_like(Bu[:, 0, :])
        hs = []
        for t in range(L):
            h = Lam_bar[None, :] * h + Bu[:, t, :]
            hs.append(h)
        hseq = torch.stack(hs, 1)
        y = 2.0 * torch.einsum("blp,dp->bld", hseq, Cmat).real + x * Dskip[None, None, :]
        return y

    def _B_ref(x, w_gate, w_up, w_down):
        return (_gelu(x @ w_gate) * (x @ w_up)) @ w_down

    x = A_x
    xn = _layernorm(x, axis=-1)
    return x + _A_ref(xn, A_Lambda_re, A_Lambda_im, A_B_re, A_B_im, A_C_re, A_C_im, A_log_dt, A_Dskip) + _B_ref(xn, B_w_gate, B_w_up, B_w_down)
```

```python
class Asm:
    def __init__(self):
        self.lines = []
        self._lbl = 0
    def __call__(self, s, *a):
        if a:
            s = s % a
        for l in s.split('\n'):
            l = l.strip()
            if l:
                self.lines.append(('' if l.endswith(':') or l.startswith('.') else '    ') + l)
    def label(self, name):
        self.lines.append(name + ':')
    def newlabel(self, p='L'):
        self._lbl += 1
        return '%s_%d' % (p, self._lbl)
    def comment(self, s):
        self.lines.append('    ; ' + s)
    def text(self):
        return '\n'.join(self.lines) + '\n'

def v(i, n=1):
    return 'v%d' % i if n == 1 else 'v[%d:%d]' % (i, i + n - 1)
def s(i, n=1):
    return 's%d' % i if n == 1 else 's[%d:%d]' % (i, i + n - 1)
def a(i, n=1):
    return 'a%d' % i if n == 1 else 'a[%d:%d]' % (i, i + n - 1)

def kernel_begin(A, name):
    A('.text')
    A('.globl %s' % name)
    A('.p2align 8')
    A('.type %s,@function' % name)
    A.label(name)

def kernel_desc(A, name, vgpr, sgpr, accum):
    A('.section .rodata,"a"')
    A('.p2align 6')
    A('.amdhsa_kernel %s' % name)
    A.lines.append('  .amdhsa_next_free_vgpr %d' % vgpr)
    A.lines.append('  .amdhsa_next_free_sgpr %d' % sgpr)
    A.lines.append('  .amdhsa_accum_offset %d' % accum)
    A.lines.append('  .amdhsa_group_segment_fixed_size 0')
    A.lines.append('  .amdhsa_kernarg_size 128')
    A.lines.append('  .amdhsa_user_sgpr_count 2')
    A.lines.append('  .amdhsa_user_sgpr_kernarg_segment_ptr 1')
    A.lines.append('  .amdhsa_system_sgpr_workgroup_id_x 1')
    A('.end_amdhsa_kernel')

def srd(A, d, base, nbytes):
    A('s_mov_b32 %s, %s', s(d), s(base))
    A('s_mov_b32 %s, %s', s(d + 1), s(base + 1))
    A('s_mov_b32 %s, 0x%x', s(d + 2), nbytes)
    A('s_mov_b32 %s, 0x00020000', s(d + 3))
```

```python
import sys, struct
from asmlib import *
from layout import *

STAGE = 51200
NSTG = 10
XL = 3 * STAGE
T_FFN = XL
T_M = XL + 2304
T_R = XL + 2880
T_CS = XL + 3456
LDS_K1 = XL + 4608
TRB = STAGE
def f2u(x): return struct.unpack('<I', struct.pack('<f', x))[0]
C1 = -2.0 * 0.7978845608028654 * 1.4426950408889634
C2 = C1 * 0.044715
PX, PLRE, PLIM, PBRE, PBIM, PCRE, PCIM, PLDT, PDSK, PBX, PWG, PWU, PWD, POUT, PDBG, PWS = [64 + 2 * i for i in range(16)]
ACC = 100
def acc(rb, c, r=0): return ACC + (rb * 4 + c) * 4 + r

def gen_k1(A, name='k1_kernel', stamps=False):
    N = name
    kernel_begin(A, N)
    def stamp(i):
        if stamps: A('s_memtime s[%d:%d]', 96 + 0, 97 + 0) if False else None
    A('s_cmp_ge_u32 s2, 256')
    A('s_cbranch_scc1 %s_end', N)
    A('s_load_dwordx16 s[64:79], s[0:1], 0')
    A('s_load_dwordx16 s[80:95], s[0:1], 64')
    if stamps:
        A('s_memtime s[48:49]')
    A('v_lshrrev_b32 v1, 6, v0')
    A('v_and_b32 v2, 63, v0')
    A('v_readfirstlane_b32 s21, v1')
    A('s_and_b32 s3, s2, 7')
    A('s_lshl_b32 s3, s3, 5')
    A('s_lshr_b32 s16, s2, 3')
    A('s_add_u32 s3, s3, s16')
    A('s_cmp_ge_u32 s3, 255')
    A('s_cbranch_scc1 %s_end', N)
    A('s_mul_i32 s16, s3, 1093')
    A('s_lshr_b32 s16, s16, 16')
    A('s_mul_i32 s17, s16, 60')
    A('s_sub_u32 s17, s3, s17')
    A('s_lshr_b32 s18, s17, 2')
    A('s_and_b32 s19, s17, 3')
    A('s_lshl_b32 s16, s16, 2')
    A('s_add_u32 s19, s19, s16')
    A('s_sub_u32 s17, s3, 180')
    A('s_mul_i32 s16, s17, 13108')
    A('s_lshr_b32 s16, s16, 16')
    A('s_mul_i32 s20, s16, 5')
    A('s_sub_u32 s20, s17, s20')
    A('s_add_u32 s20, s20, 12')
    A('s_cmp_ge_u32 s3, 180')
    A('s_cselect_b32 s18, s16, s18')
    A('s_cselect_b32 s19, s20, s19')
    A('s_cmp_lt_u32 s19, 10')
    A('s_cselect_b32 s20, 1, 0')
    A('s_and_b32 s22, s21, 3')
    A('s_and_b32 s16, s22, 1')
    A('s_lshr_b32 s17, s22, 1')
    A('v_lshrrev_b32 v5, 4, v2')
    A('s_cmp_lt_u32 s21, 4')
    A('s_cbranch_scc1 %s_comp', N)

    A('s_and_b32 s23, s20, s17')
    A('v_lshrrev_b32 v3, 3, v2')
    A('v_and_b32 v4, 7, v2')
    A('v_xor_b32 v6, v4, v5')
    A('v_xor_b32 v7, 4, v6')
    A('v_lshrrev_b32 v12, 5, v2')
    A('v_mul_u32_u24 v12, 36, v12')
    A('v_and_b32 v13, 3, v3')
    A('v_add_u32 v12, v12, v13')
    A('s_mul_i32 s44, s16, 72')
    A('s_lshl_b32 s45, s17, 2')
    A('s_add_u32 s44, s44, s45')
    A('s_lshl_b32 s45, s22, 3')
    A('s_cmp_eq_u32 s20, 1')
    A('s_cselect_b32 s44, s44, s45')
    A('s_cselect_b64 vcc, -1, 0')
    A('s_mov_b32 s45, 40960')
    A('s_cselect_b32 s55, 10240, s45')
    A('s_mul_i32 s45, s18, 144')
    A('s_add_u32 s44, s44, s45')
    A('v_cndmask_b32 v12, v3, v12, vcc')
    A('v_add_u32 v12, s44, v12')
    A('v_mul_u32_u24 v12, 1280, v12')
    A('s_cmp_eq_u32 s16, 1')
    A('s_cselect_b64 vcc, -1, 0')
    A('v_bfe_u32 v8, v2, 4, 1')
    A('v_lshlrev_b32 v8, 1, v8')
    A('v_cndmask_b32 v13, v6, v7, vcc')
    A('v_lshl_add_u32 v18, v13, 4, v12')
    A('v_xor_b32 v8, v4, v8')
    A('v_xor_b32 v9, 4, v8')
    A('v_mul_u32_u24 v12, 1280, v3')
    A('v_mul_u32_u24 v13, 3072, v3')
    A('v_lshl_add_u32 v14, v6, 4, v12')
    A('v_lshl_add_u32 v15, v7, 4, v12')
    A('v_lshl_add_u32 v16, v8, 4, v13')
    A('v_lshl_add_u32 v17, v9, 4, v13')
    A('s_cmp_eq_u32 s23, 1')
    A('s_cselect_b64 vcc, -1, 0')
    A('s_mov_b32 s44, %d', D * F * 2)
    A('s_cselect_b32 s34, %d, s44', P * D * 2)
    A('s_mov_b32 s44, %d', 8 * 3072 - 1024)
    A('s_cselect_b32 s56, %d, s44', 8 * 1280 - 1024)
    A('s_mov_b32 s44, %d', 64 * 3072)
    A('s_cselect_b32 s57, 128, s44')
    A('v_cndmask_b32 v10, v16, v14, vcc')
    A('v_cndmask_b32 v11, v17, v15, vcc')
    A('s_lshl_b32 s44, s19, 1')
    A('s_sub_u32 s44, s44, 10')
    A('s_add_u32 s44, s44, s17')
    A('s_cmp_eq_u32 s20, 1')
    A('s_cselect_b32 s44, s19, s44')
    A('s_lshl_b32 s44, s44, 7')
    A('s_mul_i32 s45, s19, %d', 64 * 1280)
    A('s_cmp_eq_u32 s23, 1')
    A('s_cselect_b32 s59, s45, s44')
    A('s_mov_b32 s58, 0')
    A('s_mov_b32 s60, 0')
    A('s_lshl_b32 s61, s22, 10')
    A('s_lshl_b32 s62, s22, 13')
    A('s_add_u32 s62, s62, 18432')
    A('s_mov_b32 s35, 0x00020000')
    A('s_mov_b32 s26, 0x%x', L * D * 2)
    A('s_mov_b32 s27, 0x00020000')
    A('s_waitcnt lgkmcnt(0)')
    A('s_mov_b32 s24, %s', s(PX))
    A('s_mov_b32 s25, %s', s(PX + 1))
    A('s_cmp_eq_u32 s16, 0')
    A('s_cselect_b64 s[44:45], %s, %s', s(PWG, 2), s(PWU, 2))
    A('s_cselect_b64 s[46:47], %s, %s', s(PBRE, 2), s(PBIM, 2))
    A('s_cmp_eq_u32 s23, 1')
    A('s_cselect_b64 s[32:33], s[46:47], s[44:45]')

    def dma():
        for n in range(5):
            if n == 0:
                A('s_add_u32 m0, s60, s61'); A('s_mov_b32 s63, s58')
            else:
                A('s_add_u32 m0, m0, 4096'); A('s_add_u32 s63, s63, s55')
            if n == 4:
                lb = A.newlabel(N + '_skA')
                A('s_cmp_ge_u32 s22, 2')
                A('s_cbranch_scc1 %s', lb)
                A('buffer_load_dwordx4 v18, s[24:27], s63 offen lds')
                A.label(lb)
            else:
                A('buffer_load_dwordx4 v18, s[24:27], s63 offen lds')
        for i in range(8):
            if i == 0:
                A('s_add_u32 m0, s60, s62'); A('s_mov_b32 s63, s59')
            elif i == 4:
                A('s_add_u32 m0, m0, 4096'); A('s_add_u32 s63, s63, s56'); A('s_add_u32 s63, s63, 4096')
            else:
                A('s_add_u32 s63, s63, s56')
            A('buffer_load_dwordx4 %s, s[32:35], s63 offen offset:%d lds', 'v10' if i % 2 == 0 else 'v11', (i % 4) * 1024)
        A('s_add_u32 s58, s58, 128')
        A('s_add_u32 s59, s59, s57')
        A('s_add_u32 s60, s60, %d', STAGE)
        A('s_cmp_eq_u32 s60, %d', 3 * STAGE)
        A('s_cselect_b32 s60, 0, s60')
    A('s_mov_b32 s54, 0')
    A.label(N + '_hpro')
    dma()
    A('s_add_u32 s54, s54, 1')
    A('s_cmp_lt_u32 s54, 3')
    A('s_cbranch_scc1 %s_hpro', N)

    def frag_addrs():
        A('v_and_b32 v12, 15, v2')
        A('v_bfe_u32 v13, v2, 1, 3')
        A('v_xor_b32 v13, v5, v13')
        A('v_lshlrev_b32 v13, 4, v13')
        A('v_lshl_add_u32 v20, v12, 7, v13')
        A('v_xor_b32 v21, 64, v20')
        A('v_lshrrev_b32 v13, 2, v12')
        A('v_lshl_add_u32 v13, v5, 3, v13')
        A('v_lshlrev_b32 v13, 7, v13')
        A('v_and_b32 v14, 3, v2')
        A('v_lshl_add_u32 v13, v14, 3, v13')
        A('v_bfe_u32 v14, v2, 3, 2')
        A('s_lshl_b32 s44, s16, 1')
        A('s_lshl_b32 s45, s17, 14')
        A('s_cmp_eq_u32 s20, 1')
        A('s_cselect_b32 s44, s22, s44')
        A('s_cselect_b32 s45, 0, s45')
        A('s_add_u32 s45, s45, 18432')
        A('v_xor_b32 v15, s44, v14')
        A('v_lshl_add_u32 v22, v15, 5, v13')
        A('v_add_u32 v22, s45, v22')
        A('v_xor_b32 v23, 32, v22')
        A('s_lshl_b32 s44, s22, 11')
        A('s_add_u32 s44, s44, %d', 18432 + 16384)
        A('v_add_u32 v24, s44, v20')
        A('v_add_u32 v25, s44, v21')
    frag_addrs()
    A('s_lshl_b32 s44, s22, 12')
    A('v_add_u32 v36, s44, v20')
    A('v_add_u32 v37, s44, v21')
    srd(A, 28, PWS, WS_USED)
    for i in range(40, 50): A('v_mov_b32 v%d, 0', i)
    A('v_mov_b32 v50, 0x7f000000')
    A('v_mov_b32 v51, 0x7f000000')
    A('s_mov_b32 s52, 0x3f803f80')
    A('s_mov_b32 s53, 0')
    A('s_mov_b32 s54, 0')
    A('s_waitcnt vmcnt(24)')
    A('s_barrier')
    A.label(N + '_hloop')
    lb = A.newlabel(N + '_h')
    A('s_cmp_eq_u32 s54, 0')
    A('s_cbranch_scc1 %s_sideA', N)
    A('s_cmp_ge_u32 s54, 8')
    A('s_cbranch_scc1 %s_hstats', N)
    A('s_cmp_eq_u32 s54, 3')
    A('s_cbranch_scc1 %s_sideB', N)
    A.label(N + '_hdma')
    dma()
    A.label(N + '_hstats')
    for i, b in enumerate((36, 37, 22, 23, 24, 25, 20, 21)):
        A('v_add_u32 v%d, s53, v%d', 26 + i, b)
    DA = 64
    for k in range(2):
        for ss in range(2):
            A('ds_read_b128 %s, v%d offset:%d', v(DA + (k * 2 + ss) * 4, 4), 26 + ss, k * 2048)
    lq = A.newlabel(N + '_hq'); lj = A.newlabel(N + '_hj')
    A('s_cmp_eq_u32 s20, 1')
    A('s_cbranch_scc1 %s', lq)
    DB = 80
    def bdat(c, ss): return DB + (c * 2 + ss) * 4
    for m in range(2):
        for p in range(2):
            for ss in range(2):
                for hf in range(2):
                    A('ds_read_b64_tr_b16 %s, v%d offset:%d', v(bdat(2 * m + p, ss) + 2 * hf, 2), 28 + p, m * 8192 + (32 * ss + 4 * hf) * 128)
    A('s_branch %s', lj)
    A.label(lq)
    for m in range(2):
        for ss in range(2):
            for hf in range(2):
                A('ds_read_b64_tr_b16 %s, v28 offset:%d', v(bdat(m, ss) + 2 * hf, 2), m * 8192 + (32 * ss + 4 * hf) * 128)
    for m in range(2):
        for ss in range(2):
            A('ds_read_b128 %s, v%d offset:%d', v(bdat(2 + m, ss), 4), 30 + ss, m * 8192)
    A.label(lj)
    A('s_waitcnt lgkmcnt(12)')
    for i in range(8):
        for k in range(2):
            A('v_dot2c_f32_bf16 v%d, s52, v%d', 40 + k, DA + k * 8 + i)
            A('v_dot2c_f32_bf16 v%d, v%d, v%d', 42 + k, DA + k * 8 + i, DA + k * 8 + i)
    l8 = A.newlabel(N + '_h8')
    A('s_cmp_lg_u32 s22, 3')
    A('s_cbranch_scc1 %s', l8)
    for ss in range(2):
        A('ds_read_b128 %s, v%d offset:16384', v(112 + ss * 4, 4), 32 + ss)
    A('s_waitcnt lgkmcnt(0)')
    for i in range(8):
        A('v_dot2c_f32_bf16 v44, s52, v%d', 112 + i)
        A('v_dot2c_f32_bf16 v45, v%d, v%d', 112 + i, 112 + i)
    A.label(l8)
    A('s_waitcnt lgkmcnt(0)')
    for i in range(8):
        for c in range(4):
            A('v_dot2c_f32_bf16 v%d, s52, v%d', 46 + c, DB + c * 8 + i)
    A('s_add_u32 s53, s53, %d', STAGE)
    A('s_cmp_eq_u32 s53, %d', 3 * STAGE)
    A('s_cselect_b32 s53, 0, s53')
    A('s_cmp_eq_u32 s54, 9')
    A('s_cbranch_scc1 %s_hfin', N)
    w0 = A.newlabel(N + '_w'); wd = A.newlabel(N + '_w')
    A('s_cmp_eq_u32 s54, 8')
    A('s_cbranch_scc1 %s', w0)
    A('s_waitcnt vmcnt(22)')
    A('s_cmp_lt_u32 s54, 2')
    A('s_cbranch_scc1 %s', wd)
    A('s_waitcnt vmcnt(12)')
    A('s_branch %s', wd)
    A.label(w0)
    A('s_waitcnt vmcnt(0)')
    A.label(wd)
    A('s_add_u32 s54, s54, 1')
    A('s_barrier')
    A('s_branch %s_hloop', N)

    A.label(N + '_sideA')
    A('s_lshl_b32 s50, s3, 2')
    A('s_add_u32 s50, s50, s22')
    A('s_mul_i32 s44, s50, 3277')
    A('s_lshr_b32 s44, s44, 16')
    A('s_mul_i32 s45, s44, 20')
    A('s_sub_u32 s45, s50, s45')
    srd(A, 40, PWD, F * D * 2)
    A('v_and_b32 v12, 15, v2')
    A('v_mul_u32_u24 v13, %d, v5', 4 * 1280)
    A('v_lshl_add_u32 v13, v12, 2, v13')
    A('s_mul_i32 s46, s44, %d', 32 * 1280)
    A('s_lshl_b32 s47, s45, 6')
    A('s_add_u32 s46, s46, s47')
    A('s_add_u32 s47, s46, %d', 16 * 1280)
    for jj in range(8):
        A('buffer_load_dword v%d, v13, s[40:43], %s offen offset:%d', 120 + jj, 's46' if jj < 4 else 's47', (jj & 3) * 1280)
    A('v_lshrrev_b32 v14, 3, v12')
    A('s_lshl_b32 s47, s45, 1')
    A('v_add_u32 v14, s47, v14')
    A('v_mul_u32_u24 v15, 52, v14')
    A('v_lshrrev_b32 v15, 8, v15')
    A('v_mul_u32_u24 v16, 5, v15')
    A('v_sub_u32 v16, v14, v16')
    A('v_mul_u32_u24 v15, %d, v15', KS2 * 5)
    A('v_add_u32 v15, v15, v16')
    A('s_add_u32 s47, s44, 40')
    A('s_mul_i32 s47, s47, 5')
    A('v_add_u32 v15, s47, v15')
    A('v_lshlrev_b32 v15, 10, v15')
    A('v_lshl_add_u32 v15, v5, 8, v15')
    A('v_and_b32 v16, 7, v12')
    A('v_lshl_add_u32 v50, v16, 5, v15')
    A('s_cmp_lt_u32 s50, 960')
    A('s_cselect_b32 s47, 0, 0x7f000000')
    A('v_add_u32 v50, s47, v50')
    srd(A, 40, PCRE, D * P * 2)
    srd(A, 36, PCIM, D * P * 2)
    A('v_lshrrev_b32 v12, 2, v2')
    A('v_and_b32 v14, 3, v2')
    A('v_mul_u32_u24 v13, 1280, v12')
    A('v_lshl_add_u32 v13, v14, 4, v13')
    A('s_mul_i32 s46, s44, %d', 16 * 1280)
    A('s_lshl_b32 s47, s45, 6')
    A('s_add_u32 s46, s46, s47')
    A('buffer_load_dwordx4 v[128:131], v13, s[40:43], s46 offen')
    A('buffer_load_dwordx4 v[132:135], v13, s[36:39], s46 offen')
    A('s_mul_i32 s46, s44, 52')
    A('s_lshr_b32 s46, s46, 8')
    A('s_mul_i32 s47, s46, 5')
    A('s_sub_u32 s47, s44, s47')
    A('s_mul_i32 s46, s46, %d', KS2 * 5)
    A('s_add_u32 s46, s46, s47')
    A('s_mul_i32 s47, s45, 10')
    A('s_add_u32 s46, s46, s47')
    A('s_lshl_b32 s46, s46, 10')
    A('s_cmp_lt_u32 s50, 800')
    A('s_cselect_b32 s46, s46, 0x7f000000')
    A('v_lshrrev_b32 v15, 1, v14')
    A('v_mul_u32_u24 v15, 5120, v15')
    A('v_and_b32 v14, 1, v14')
    A('v_lshl_add_u32 v15, v14, 8, v15')
    A('v_lshl_add_u32 v15, v12, 4, v15')
    A('v_add_u32 v51, s46, v15')
    A('s_branch %s_hstats', N)

    A.label(N + '_sideB')
    A('s_mov_b32 s44, 0x05040100')
    A('s_mov_b32 s45, 0x07060302')
    for i in range(4):
        A('v_perm_b32 v%d, v%d, v%d, s44', 136 + i, 121 + 2 * i, 120 + 2 * i)
        A('v_perm_b32 v%d, v%d, v%d, s45', 140 + i, 121 + 2 * i, 120 + 2 * i)
    A('s_mov_b32 s46, 0x%x', W2_OFF)
    A('buffer_store_dwordx4 v[136:139], v50, s[28:31], s46 offen')
    A('buffer_store_dwordx4 v[140:143], v50, s[28:31], s46 offen offset:16')
    A('buffer_store_dwordx4 v[128:131], v51, s[28:31], s46 offen')
    A('buffer_store_dwordx4 v[132:135], v51, s[28:31], s46 offen offset:512')
    A('s_branch %s_hdma', N)

    A.label(N + '_hfin')
    srd(A, 40, PDBG, 256)
    A('s_lshl_b32 s51, s19, 2')
    A('s_add_u32 s51, s51, s22')
    A('s_lshl_b32 s51, s51, 2')
    A('s_lshl_b32 s46, 1, s18')
    A('s_sub_u32 s46, s46, 1')
    A('s_cmp_eq_u32 s20, 1')
    A('s_cselect_b32 s46, s46, 0')
    A('v_mov_b32 v55, 0')
    A('buffer_load_dword v56, v55, s[40:43], s51 offen sc1')
    vals = list(range(40, 50))
    def red(step):
        for i, x in enumerate(vals): A('v_mov_b32 v%d, v%d', 64 + i, x)
        A('s_nop 1')
        for i, x in enumerate(vals): A('v_permlane%d_swap_b32 v%d, v%d', step, x, 64 + i)
        A('s_nop 1')
        for i, x in enumerate(vals): A('v_add_f32 v%d, v%d, v%d', x, x, 64 + i)
    A('s_nop 2')
    red(32); red(16)
    A('v_and_b32 v12, 15, v2')
    A('s_lshl_b32 s44, s22, 8')
    A('s_add_u32 s44, s44, %d', T_CS)
    A('v_lshl_add_u32 v13, v12, 2, s44')
    for c in range(4):
        A('ds_write_b32 v13, v%d offset:%d', 46 + c, c * 64)
    A('v_lshrrev_b32 v14, 2, v12')
    A('v_mul_u32_u24 v14, 36, v14')
    A('v_and_b32 v15, 3, v12')
    A('v_add_u32 v14, v14, v15')
    A('s_cmp_eq_u32 s20, 1')
    A('s_cselect_b64 vcc, -1, 0')
    A('s_cselect_b32 s45, 4, 16')
    A('s_mov_b32 s44, 0x%x', ST_OFF)
    A('v_cndmask_b32 v14, v12, v14, vcc')
    A('s_cmp_eq_u32 s19, 0')
    A('s_cselect_b32 s47, s44, 0x7f000000')
    A('s_mul_i32 s44, s18, %d', 144 * 8)
    A('s_add_u32 s47, s47, s44')
    def rowstat(sx, sxx, srb):
        A('v_mul_f32 v64, 0x%x, v%d', f2u(1.0 / 640), sx)
        A('v_mul_f32 v65, 0x%x, v%d', f2u(1.0 / 640), sxx)
        A('v_fma_f32 v65, -v64, v64, v65')
        A('v_max_f32 v65, 0, v65')
        A('v_cvt_pk_bf16_f32 v66, v64, v65')
        A('v_lshlrev_b32 v68, 16, v66')
        A('v_and_b32 v65, 0xffff0000, v66')
        A('v_add_f32 v65, 0x%x, v65', f2u(1e-5))
        A('v_cvt_pk_bf16_f32 v66, v65, v65')
        A('v_lshlrev_b32 v65, 16, v66')
        A('v_sqrt_f32 v65, v65')
        A('s_mul_i32 s44, %s, s45', srb)
        A('v_cvt_pk_bf16_f32 v66, v65, v65')
        A('v_lshlrev_b32 v65, 16, v66')
        A('v_rcp_f32 v73, v65')
        A('v_mul_f32 v71, v65, v65')
        A('v_mov_b32 v72, v68')
        A('v_mul_f32 v69, 0x%x, v73', f2u(C1))
        A('v_mul_f32 v70, v73, v73')
        A('v_mul_f32 v70, v70, v73')
        A('v_mul_f32 v70, 0x%x, v70', f2u(C2))
        A('v_add_u32 v74, s44, v14')
        A('s_lshl_b32 s44, %s, 8', srb)
        A('s_add_u32 s44, s44, %d', T_FFN)
        A('v_lshl_add_u32 v75, v12, 4, s44')
        A('ds_write_b128 v75, v[68:71]')
        A('v_lshlrev_b32 v75, 2, v74')
        A('v_add_u32 v75, %d, v75', T_M)
        A('ds_write_b32 v75, v68')
        A('ds_write_b32 v75, v73 offset:%d', T_R - T_M)
        A('v_lshlrev_b32 v76, 3, v74')
        A('buffer_store_dwordx2 v[72:73], v76, s[28:31], s47 offen')
        A('s_nop 1')
    A('s_lshl_b32 s43, s22, 1') if False else None
    A('s_lshl_b32 s4, s22, 1')
    rowstat(40, 42, 's4')
    A('s_add_u32 s4, s4, 1')
    rowstat(41, 43, 's4')
    l8 = A.newlabel(N + '_f8')
    A('s_cmp_lg_u32 s22, 3')
    A('s_cbranch_scc1 %s', l8)
    A('s_mov_b32 s4, 8')
    rowstat(44, 45, 's4')
    A.label(l8)
    lp = A.newlabel(N + '_pl'); lo = A.newlabel(N + '_po')
    A('s_mov_b32 s5, 0')
    A.label(lp)
    A('s_waitcnt vmcnt(0)')
    A('v_readfirstlane_b32 s44, v56')
    A('s_and_b32 s44, s44, s46')
    A('s_cmp_eq_u32 s44, s46')
    A('s_cbranch_scc1 %s', lo)
    A('s_add_u32 s5, s5, 1')
    A('s_cmp_ge_u32 s5, 0x40000')
    A('s_cbranch_scc1 %s', lo)
    A('buffer_load_dword v56, v55, s[40:43], s51 offen sc1')
    A('s_branch %s', lp)
    A.label(lo)
    A('s_waitcnt lgkmcnt(0)')
    A('s_barrier')
    A('s_endpgm')

    A.label(N + '_comp')
    A('s_setprio 2')
    frag_addrs()
    for i in range(6):
        A('v_mov_b32 %s, %s', v(26 + i), v(20 + i))
    A('s_waitcnt lgkmcnt(0)')
    srd(A, 28, PWS, WS_USED)
    srd(A, 36, PWS, G_BYTES)
    srd(A, 24, PLRE, P * 2)
    srd(A, 32, PLIM, P * 2)
    srd(A, 40, PLDT, P * 2)
    A('v_and_b32 v12, 15, v2')
    A('s_lshl_b32 s44, s19, 6')
    A('s_lshl_b32 s45, s22, 4')
    A('s_add_u32 s44, s44, s45')
    A('v_add_u32 v3, s44, v12')
    A('v_lshlrev_b32 v13, 1, v3')
    A('buffer_load_ushort v14, v13, s[24:27], 0 offen')
    A('buffer_load_ushort v15, v13, s[32:35], 0 offen')
    A('buffer_load_ushort v16, v13, s[40:43], 0 offen')
    A('s_mul_i32 s9, s18, 5120')
    A('s_add_u32 s9, s9, 0x%x', SC_OFF)
    A('s_cmp_eq_u32 s20, 1')
    A('s_cselect_b32 s46, s9, 0x7f000000')
    A('v_lshlrev_b32 v17, 3, v3')
    A('v_mov_b32 v244, -1')
    A('v_mov_b32 v245, -1')
    A('buffer_store_dwordx2 v[244:245], v17, s[28:31], s46 offen sc1')
    for i in range(144):
        A('v_mov_b32 v%d, 0', ACC + i)
    A('s_mov_b32 s53, 0')
    A('s_mov_b32 s54, 0')
    srd(A, 12, PDBG, 256)
    A('s_lshl_b32 s46, s19, 2')
    A('s_add_u32 s46, s46, s22')
    A('s_lshl_b32 s46, s46, 2')
    A('s_cmp_eq_u32 s20, 1')
    A('s_cselect_b32 s46, s46, 0x7f000000')
    A('s_lshl_b32 s47, 1, s18')
    A('v_mov_b32 v246, s47')
    A('v_lshlrev_b32 v247, 8, v2')
    A('s_waitcnt vmcnt(0)')
    A('buffer_atomic_or v246, v247, s[12:15], s46 offen sc1')
    A('v_lshlrev_b32 v14, 16, v14')
    A('v_lshlrev_b32 v15, 16, v15')
    A('v_lshlrev_b32 v16, 16, v16')
    A('v_mul_f32 v16, 0x%x, v16', f2u(1.4426950408889634))
    A('v_exp_f32 v16, v16')
    A('s_nop 0')
    A('v_cvt_pk_bf16_f32 v16, v16, v16')
    A('v_lshlrev_b32 v16, 16, v16')
    A('v_mul_f32 v6, v16, v14')
    A('v_mul_f32 v7, v16, v15')
    A('v_mul_f32 v6, 0x%x, v6', f2u(1.4426950408889634))
    A('v_mul_f32 v7, 0.15915494, v7')
    def cpow(dst, n_v=None, n_c=None, t0=244):
        if n_v is not None:
            A('v_mul_f32 v%d, v%d, v6', t0, n_v)
            A('v_mul_f32 v%d, v%d, v7', t0 + 1, n_v)
        elif n_c == 1:
            A('v_mov_b32 v%d, v6', t0)
            A('v_mov_b32 v%d, v7', t0 + 1)
        else:
            A('v_mul_f32 v%d, 0x%x, v6', t0, f2u(float(n_c)))
            A('v_mul_f32 v%d, 0x%x, v7', t0 + 1, f2u(float(n_c)))
        A('v_exp_f32 v%d, v%d', t0, t0)
        A('v_fract_f32 v%d, v%d', t0 + 1, t0 + 1)
        A('v_cos_f32 v%d, v%d', dst, t0 + 1)
        A('v_sin_f32 v%d, v%d', dst + 1, t0 + 1)
        A('s_nop 0')
        A('v_mul_f32 v%d, v%d, v%d', dst, dst, t0)
        A('v_mul_f32 v%d, v%d, v%d', dst + 1, dst + 1, t0)
    A('v_exp_f32 v244, v6')
    A('v_rndne_f32 v245, v7')
    A('v_sub_f32 v245, v7, v245')
    A('v_cos_f32 v8, v245')
    A('v_sin_f32 v9, v245')
    A('s_nop 0')
    A('v_mul_f32 v8, v8, v244')
    A('v_mul_f32 v9, v9, v244')
    A('v_sub_f32 v4, 0, v9')
    cpow(18, n_c=36)
    A('v_mul_f32 v244, v14, v14')
    A('v_fmac_f32 v244, v15, v15')
    A('v_rcp_f32 v244, v244')
    A('v_add_f32 v245, -1.0, v8')
    A('v_mul_f32 v10, v245, v14')
    A('v_fmac_f32 v10, v9, v15')
    A('v_mul_f32 v11, v9, v14')
    A('v_fma_f32 v11, -v245, v15, v11')
    A('v_add_f32 v244, v244, v244')
    A('v_mul_f32 v10, v10, v244')
    A('v_mul_f32 v11, v11, v244')

    def ra(rb): return 32 + rb * 4
    def rb_(st, c): return 68 + st * 16 + c * 4
    def breads(st, isq):
        ss = st; r = []
        if isq:
            for m in range(2):
                for hf in range(2):
                    r.append('ds_read_b64_tr_b16 %s, v28 offset:%d' % (v(rb_(st, m) + 2 * hf, 2), m * 8192 + (32 * ss + 4 * hf) * 128))
            for m in range(2):
                r.append('ds_read_b128 %s, %s offset:%d' % (v(rb_(st, 2 + m), 4), 'v30' if ss == 0 else 'v31', m * 8192))
        else:
            for m in range(2):
                for p in range(2):
                    for hf in range(2):
                        r.append('ds_read_b64_tr_b16 %s, %s offset:%d' % (v(rb_(st, 2 * m + p) + 2 * hf, 2), 'v28' if p == 0 else 'v29', m * 8192 + (32 * ss + 4 * hf) * 128))
        return r
    def aread(ss, rb):
        return 'ds_read_b128 %s, %s offset:%d' % (v(ra(rb), 4), 'v26' if ss == 0 else 'v27', rb * 2048)
    def mf(st, isq, rb, c):
        d = v(acc(rb, c), 4)
        if isq and c >= 2:
            return 'v_mfma_f32_16x16x32_bf16 %s, %s, %s, %s' % (d, v(ra(rb), 4), v(rb_(st, c), 4), d)
        return 'v_mfma_f32_16x16x32_bf16 %s, %s, %s, %s' % (d, v(rb_(st, c), 4), v(ra(rb), 4), d)
    def substep(st, isq, nxt, pend, defer=0, pre=(), mid=None):
        q = []
        pre = list(pre)
        bq = breads(1 - st, isq) if nxt else []
        started = (defer == 0)
        if started: q += [(l, 'B%d' % (1 - st)) for l in bq]
        for rb in range(9):
            if rb == defer and defer:
                for l in pre: A(l)
                pre = []
                mid(); pend[:] = []
                started = True
                q = q + [(l, 'B%d' % (1 - st)) for l in bq]
            need = [i for i, t in enumerate(pend) if t == 'A%d_%d' % (st, rb) or t == 'B%d' % st]
            if need:
                n_after = len(pend) - 1 - max(need)
                if n_after < 15: A('s_waitcnt lgkmcnt(%d)', n_after)
                del pend[:max(need) + 1]
            for c in range(4):
                A(mf(st, isq, rb, c))
                if not started:
                    for _ in range(2):
                        if pre: A(pre.pop(0))
                if started and q and c < 3:
                    l, t = q.pop(0); A(l); pend.append(t)
            if nxt:
                q.append((aread(1 - st, rb), 'A%d_%d' % (1 - st, rb)))
                if started:
                    l, t = q.pop(0); A(l); pend.append(t)
        while q:
            l, t = q.pop(0); A(l); pend.append(t)

    A('s_cmp_eq_u32 s20, 1')
    A('s_cbranch_scc1 %s_q', N)
    for isq in (False, True):
        tag = 'q' if isq else 'p'
        if isq: A.label('%s_q' % N)
        A('s_barrier')
        if stamps: A('s_memtime s[50:51]')
        for l in breads(0, isq): A(l)
        for rb in range(9): A(aread(0, rb))
        A('s_waitcnt lgkmcnt(0)')
        A.label('%s_loop_%s' % (N, tag))
        def body(pend):
            substep(0, isq, True, pend)
            A('s_add_u32 s54, s54, 1')
            A('s_cmp_eq_u32 s54, %d', NSTG)
            A('s_cbranch_scc1 %s_tail_%s', N, tag)
            tail_pend = list(pend)
            pre = ['s_add_u32 s53, s53, %d' % STAGE, 's_cmp_eq_u32 s53, %d' % (3 * STAGE), 's_cselect_b32 s53, 0, s53']
            pre += ['v_add_u32 %s, s53, %s' % (v(26 + i), v(20 + i)) for i in range(6) if isq and i != 3 or not isq and i < 4]
            def mid():
                A('s_waitcnt lgkmcnt(0)')
                A('s_barrier')
            substep(1, isq, True, pend, defer=2, pre=pre, mid=mid)
            return tail_pend
        mark = len(A.lines)
        p0 = []
        body(p0)
        del A.lines[mark:]
        p1 = list(p0)
        tail_pend = body(p1)
        assert p1 == p0
        A('s_branch %s_loop_%s', N, tag)
        A.label('%s_tail_%s' % (N, tag))
        substep(1, isq, False, tail_pend)
        if stamps: A('s_memtime s[56:57]')
        A('s_barrier')
        if stamps: A('s_memtime s[58:59]')
        if isq: epi_q(A, N, cpow, stamps)
        else: epi_p(A, N, stamps)
        if not isq: A('s_branch %s_fin', N)
    A.label(N + '_fin')
    if stamps:
        A('s_waitcnt vmcnt(0)')
        A('s_memtime s[60:61]')
        A('s_memrealtime s[62:63]')
        A('s_waitcnt lgkmcnt(0)')
        A('s_lshl_b32 s44, s3, 2')
        A('s_add_u32 s44, s44, s22')
        A('s_lshl_b32 s44, s44, 6')
        A('s_add_u32 s44, s44, 0x%x', DBG_OFF)
        for i in range(16):
            A('v_mov_b32 %s, %s', v(32 + i), s(48 + i))
        A('v_mov_b32 v14, 0')
        for i in range(4):
            A('buffer_store_dwordx4 %s, v14, s[28:31], s44 offen offset:%d', v(32 + 4 * i, 4), 16 * i)
    A.label('%s_end' % N)
    A('s_endpgm')
    return dict(vgpr=256, sgpr=100, accum=256, lds=LDS_K1)

def pk(op, d, a_, b_, c_=None, sel=None, neg=None):
    srcs = [a_, b_] + ([c_] if c_ is not None else [])
    n = len(srcs)
    sel = sel or 'n' * n
    lo = [1 if x == 'h' else 0 for x in sel]
    hi = [0 if x == 'l' else 1 for x in sel]
    t = 'v_pk_%s_f32 %s, %s' % (op, v(d, 2), ', '.join(v(x, 2) for x in srcs))
    t += ' op_sel:[%s] op_sel_hi:[%s]' % (','.join(map(str, lo)), ','.join(map(str, hi)))
    if neg and any(neg):
        t += ' neg_lo:[%s] neg_hi:[%s]' % (','.join(map(str, neg)), ','.join(map(str, neg)))
    return t

def ffn_block(A, g, u, sg, su, st, tmp, out):
    t = tmp
    for h in (0, 2):
        A(pk('fma', g + h, st, sg + h, g + h, sel='lnn', neg=[1, 0, 0]))
    for h in (0, 2):
        A(pk('mul', t + h, g + h, g + h))
    for h in (0, 2):
        A(pk('fma', u + h, st, su + h, u + h, sel='lnn', neg=[1, 0, 0]))
    for h in (0, 2):
        A(pk('fma', t + h, t + h, st + 2, st, sel='nlh'))
    for h in (0, 2):
        A(pk('mul', t + h, t + h, g + h))
    for i in range(4):
        A('v_exp_f32 v%d, v%d', t + i, t + i)
    for h in (0, 2):
        A(pk('mul', g + h, g + h, u + h))
    for h in (0, 2):
        A(pk('fma', t + h, t + h, st + 2, st + 2, sel='nhh'))
    for i in range(4):
        A('v_rcp_f32 v%d, v%d', t + i, t + i)
    A('s_nop 0')
    for h in (0, 2):
        A(pk('mul', g + h, g + h, t + h))
    A('v_cvt_pk_bf16_f32 v%d, v%d, v%d', out, g, g + 1)
    A('v_cvt_pk_bf16_f32 v%d, v%d, v%d', out + 1, g + 2, g + 3)

def g_soff(A, dst, rb, ks_s):
    A('s_add_u32 s44, s6, %d', rb)
    A('s_lshr_b32 s45, s44, 2')
    A('s_mul_i32 s45, s45, %d', KS2)
    A('s_add_u32 s45, s45, %s', ks_s)
    A('s_lshl_b32 s45, s45, 2')
    A('s_and_b32 s44, s44, 3')
    A('s_add_u32 s45, s45, s44')
    A('s_lshl_b32 %s, s45, 10', dst)

def epi_p(A, N, stamps):
    A('s_lshl_b32 s44, s22, 8')
    A('s_add_u32 s44, s44, %d', T_CS)
    A('v_lshl_add_u32 v13, v5, 4, s44')
    for c in range(4):
        A('ds_read_b128 %s, v13 offset:%d', v(32 + 4 * c, 4), c * 64)
    A('v_and_b32 v12, 15, v2')
    A('v_lshlrev_b32 v12, 4, v12')
    A('v_add_u32 v12, %d, v12', T_FFN)
    for rb in range(9):
        A('ds_read_b128 %s, v12 offset:%d', v(48 + 4 * rb, 4), rb * 256)
    A('v_lshlrev_b32 v14, 4, v2')
    A('s_mul_i32 s6, s18, 9')
    A('s_lshl_b32 s7, s19, 2')
    A('s_add_u32 s7, s7, s22')
    A('s_add_u32 s7, s7, 20')
    for rb in range(9):
        A('s_waitcnt lgkmcnt(%d)', 8 - rb)
        o = 92 + (rb & 1) * 4
        for p in range(2):
            ffn_block(A, acc(rb, p), acc(rb, 2 + p), 32 + 4 * p, 40 + 4 * p, 48 + 4 * rb, 84 + 4 * p, o + 2 * p)
        g_soff(A, 's46', rb, 's7')
        A('buffer_store_dwordx4 %s, v14, s[36:39], s46 offen', v(o, 4))

def epi_q(A, N, cpow, stamps):
    A('v_and_b32 v14, 15, v2')
    A('s_lshl_b32 s44, s22, 8')
    A('s_add_u32 s44, s44, %d', T_CS + 128)
    A('v_lshl_add_u32 v15, v14, 2, s44')
    A('ds_read2_b32 v[12:13], v15 offset0:0 offset1:16')
    A('v_mul_u32_u24 v15, 144, v5')
    A('v_add_u32 v15, %d, v15', T_M)
    M0, R0 = 26, 62
    for rb in range(9):
        A('ds_read_b128 %s, v15 offset:%d', v(M0 + 4 * rb, 4), rb * 16)
        A('ds_read_b128 %s, v15 offset:%d', v(R0 + 4 * rb, 4), T_R - T_M + rb * 16)
    prev = None
    for rb in range(9):
        n_after = 2 * (8 - rb)
        if n_after < 15: A('s_waitcnt lgkmcnt(%d)', n_after)
        re, im = acc(rb, 2), acc(rb, 3)
        for h in (0, 2):
            A(pk('fma', re + h, M0 + 4 * rb + h, 12, re + h, sel='nln', neg=[1, 0, 0]))
            A(pk('fma', im + h, M0 + 4 * rb + h, 12, im + h, sel='nhn', neg=[1, 0, 0]))
        for h in (0, 2):
            A(pk('mul', re + h, re + h, R0 + 4 * rb + h))
            A(pk('mul', im + h, im + h, R0 + 4 * rb + h))
        for r in range(4):
            if prev is not None:
                pr, pi = prev
                A('v_fmac_f32 v%d, v4, v%d', re + r, pi)
                A('v_fmac_f32 v%d, v9, v%d', im + r, pr)
                A('v_fmac_f32 v%d, v8, v%d', re + r, pr)
                A('v_fmac_f32 v%d, v8, v%d', im + r, pi)
            prev = (re + r, im + r)
    A('s_mul_i32 s8, s22, 10240')
    A('s_add_u32 s8, s8, %d', TRB)
    A('v_mov_b32 v16, v%d', prev[0])
    A('v_mov_b32 v17, v%d', prev[1])
    A('v_lshl_add_u32 v15, v14, 5, s8')
    A('v_lshl_add_u32 v20, v5, 3, v15')
    A('ds_write_b64 v20, v[16:17] offset:9216')
    A('s_waitcnt lgkmcnt(0)')
    SQ = 244
    A('ds_read_b128 %s, v15 offset:9216', v(SQ, 4))
    A('ds_read_b128 %s, v15 offset:9232', v(SQ + 4, 4))
    A('v_lshlrev_b32 v21, 3, v3')
    A('s_waitcnt lgkmcnt(0)')
    def cmad(d, x, add):
        A('v_fma_f32 v%d, v18, v%d, v%d', d, x, add)
        A('v_fma_f32 v%d, v18, v%d, v%d', d + 1, x + 1, add + 1)
        A('v_fma_f32 v%d, -v19, v%d, v%d', d, x + 1, d)
        A('v_fmac_f32 v%d, v19, v%d', d + 1, x)
    cmad(22, SQ, SQ + 2)
    cmad(24, 22, SQ + 4)
    cmad(22, 24, SQ + 6)
    A('v_and_b32 v22, -2, v22')
    A('v_and_b32 v23, -2, v23')
    A('s_mov_b64 exec, 0xffff')
    A('buffer_store_dwordx2 v[22:23], v21, s[28:31], s9 offen sc1')
    A('s_mov_b64 exec, -1')
    if stamps: A('s_memtime s[52:53]')
    A('s_lshl_b32 s44, s22, 8')
    A('s_add_u32 s44, s44, %d', T_CS)
    A('v_lshl_add_u32 v13, v5, 4, s44')
    for c in range(2):
        A('ds_read_b128 %s, v13 offset:%d', v(32 + 4 * c, 4), c * 64)
    A('v_lshlrev_b32 v12, 4, v14')
    A('v_add_u32 v12, %d, v12', T_FFN)
    if stamps: A('s_waitcnt lgkmcnt(0)')
    for rb in range(9):
        A('ds_read_b128 %s, v12 offset:%d', v(48 + 4 * rb, 4), rb * 256)
    A('v_lshrrev_b32 v15, 2, v14')
    A('v_mul_u32_u24 v15, 36, v15')
    A('v_and_b32 v16, 3, v14')
    A('s_mul_i32 s44, s18, 144')
    A('v_add3_u32 v15, v15, v16, s44')
    A('s_lshl_b32 s7, s19, 1')
    A('s_add_u32 s7, s7, s17')
    A('s_add_u32 s7, s7, 40')
    A('s_lshl_b32 s7, s7, 12')
    A('s_lshl_b32 s44, s16, 3')
    A('s_add_u32 s7, s7, s44')
    A('v_lshlrev_b32 v16, 8, v5')
    A('s_mov_b32 s10, %d', KS2 * 4096)
    for rb in range(9):
        A('s_waitcnt lgkmcnt(%d)', 8 - rb)
        o = 92 + (rb & 1) * 4
        ffn_block(A, acc(rb, 0), acc(rb, 1), 32, 36, 48 + 4 * rb, 84, o)
        ad = o + 2
        A('v_add_u32 v88, %d, v15', 4 * rb)
        A('v_lshrrev_b32 v89, 6, v88')
        A('v_mul_lo_u32 v89, v89, s10')
        A('v_bfe_u32 v90, v88, 4, 2')
        A('v_lshl_add_u32 v89, v90, 10, v89')
        A('v_and_b32 v90, 15, v88')
        A('v_lshl_add_u32 v89, v90, 4, v89')
        A('v_add_u32 v%d, v89, v16', ad)
        A('buffer_store_dwordx2 %s, v%d, s[36:39], s7 offen', v(o, 2), ad)
    GA = 26
    A('s_mov_b32 s11, 0x%x', SC_OFF)
    A('v_mov_b32 v30, 0x7f000000')
    for i in range(4):
        A('v_add_u32 v31, %d, v5', 4 * i)
        A('v_mul_u32_u24 v%d, 5120, v31', GA + i)
        A('v_add_u32 v%d, v%d, v21', GA + i, GA + i)
        A('v_cmp_gt_u32 vcc, s18, v31')
        A('v_sub_u32 v31, s18, v31')
        A('v_add_u32 v31, -1, v31')
        A('v_cndmask_b32 v%d, v30, v%d, vcc', GA + i, GA + i)
        A('v_max_i32 v31, 0, v31')
        A('v_mul_u32_u24 v31, 144, v31')
        A('v_cvt_f32_u32 v%d, v31', 48 + i)
    def gather():
        for i in range(4):
            A('buffer_load_dwordx2 %s, v%d, s[28:31], s11 offen sc1', v(32 + 2 * i, 2), GA + i)
    gather()
    for i in range(4):
        cpow(40 + 2 * i, n_v=48 + i, t0=52)
    for rb in range(9):
        re, im = acc(rb, 2), acc(rb, 3)
        for h in (0, 2):
            A(pk('mul', 52 + h, im + h, 10, sel='nh'))
            A(pk('mul', im + h, im + h, 10, sel='nl', neg=[1, 0]))
        for h in (0, 2):
            A(pk('fma', im + h, re + h, 10, im + h, sel='nhn', neg=[1, 0, 0]))
            A(pk('fma', re + h, re + h, 10, 52 + h, sel='nln', neg=[0, 0, 1]))
    def cmul(dr, di, ar, ai, br, bi):
        A('v_mul_f32 v%d, v%d, v%d', dr, ar, br)
        A('v_mul_f32 v%d, v%d, v%d', di, ar, bi)
        A('v_fma_f32 v%d, -v%d, v%d, v%d', dr, ai, bi, dr)
        A('v_fmac_f32 v%d, v%d, v%d', di, ai, br)
    tr, ti = acc(0, 0), acc(0, 1)
    cmul(tr, ti, 10, 11, 8, 9)
    cmul(56, 57, 8, 9, 8, 9)
    cmul(tr + 1, ti + 1, tr, ti, 8, 9)
    cmul(58, 59, 56, 57, 56, 57)
    A(pk('mul', tr + 2, tr, 56, sel='nl'))
    A(pk('mul', ti + 2, tr, 56, sel='nh'))
    A(pk('fma', tr + 2, ti, 56, tr + 2, sel='nhn', neg=[1, 0, 0]))
    A(pk('fma', ti + 2, ti, 56, ti + 2, sel='nln'))
    for rb in range(1, 9):
        pr_, pi_ = acc(rb - 1, 0), acc(rb - 1, 1)
        nr, ni = acc(rb, 0), acc(rb, 1)
        for h in (0, 2):
            A(pk('mul', nr + h, pr_ + h, 58, sel='nl'))
            A(pk('mul', ni + h, pr_ + h, 58, sel='nh'))
        for h in (0, 2):
            A(pk('fma', nr + h, pi_ + h, 58, nr + h, sel='nhn', neg=[1, 0, 0]))
            A(pk('fma', ni + h, pi_ + h, 58, ni + h, sel='nln'))
    lp = A.newlabel(N + '_gp'); lo = A.newlabel(N + '_go')
    A('s_mov_b32 s5, 0')
    A.label(lp)
    A('s_waitcnt vmcnt(0)')
    A('v_max3_u32 v52, v32, v33, v34')
    A('v_max3_u32 v53, v35, v36, v37')
    A('v_max3_u32 v52, v52, v38, v39')
    A('v_max_u32 v52, v52, v53')
    A('v_cmp_eq_u32 vcc, -1, v52')
    A('s_add_u32 s5, s5, 1')
    A('s_nop 3')
    A('s_cbranch_vccz %s', lo)
    A('s_cmp_ge_u32 s5, 0x40000')
    A('s_cbranch_scc1 %s', lo)
    gather()
    A('s_branch %s', lp)
    A.label(lo)
    if stamps: A('s_memtime s[54:55]')
    cmul(52, 53, 40, 41, 32, 33)
    for i in range(1, 4):
        w, x = 40 + 2 * i, 32 + 2 * i
        A('v_fmac_f32 v52, v%d, v%d', w, x)
        A('v_fmac_f32 v53, v%d, v%d', w, x + 1)
        A('v_fma_f32 v52, -v%d, v%d, v52', w + 1, x + 1)
        A('v_fmac_f32 v53, v%d, v%d', w + 1, x)
    for step in (32, 16):
        A('v_mov_b32 v54, v52')
        A('v_mov_b32 v55, v53')
        A('s_nop 1')
        A('v_permlane%d_swap_b32 v52, v54', step)
        A('v_permlane%d_swap_b32 v53, v55', step)
        A('s_nop 1')
        A('v_add_f32 v52, v52, v54')
        A('v_add_f32 v53, v53, v55')
    for qq in range(3):
        cmad(54, 52, SQ + 2 * qq)
        A('v_cmp_lt_u32 vcc, %d, v5', qq)
        A('s_nop 1')
        A('v_cndmask_b32 v52, v52, v54, vcc')
        A('v_cndmask_b32 v53, v53, v55, vcc')
    A('v_mul_u32_u24 v15, 288, v14')
    A('v_mul_u32_u24 v16, 72, v5')
    A('v_add3_u32 v15, v15, v16, s8')
    for rb in range(9):
        re, im = acc(rb, 2), acc(rb, 3)
        tr, ti = acc(rb, 0), acc(rb, 1)
        for h in (0, 2):
            A(pk('fma', re + h, tr + h, 52, re + h, sel='nln'))
            A(pk('fma', im + h, tr + h, 52, im + h, sel='nhn', neg=[1, 0, 0]))
        for h in (0, 2):
            A(pk('fma', re + h, ti + h, 52, re + h, sel='nhn', neg=[1, 0, 0]))
            A(pk('fma', im + h, ti + h, 52, im + h, sel='nln', neg=[1, 0, 0]))
        A('v_cvt_pk_bf16_f32 v%d, v%d, v%d', tr, re, re + 1)
        A('v_cvt_pk_bf16_f32 v%d, v%d, v%d', tr + 1, re + 2, re + 3)
        A('v_cvt_pk_bf16_f32 v%d, v%d, v%d', tr + 2, im, im + 1)
        A('v_cvt_pk_bf16_f32 v%d, v%d, v%d', tr + 3, im + 2, im + 3)
        A('ds_write_b64 v15, %s offset:%d', v(tr, 2), 8 * rb)
        A('ds_write_b64 v15, %s offset:%d', v(tr + 2, 2), 16 * 288 + 8 * rb)
    A('v_lshrrev_b32 v16, 2, v14')
    A('v_lshl_add_u32 v16, v5, 3, v16')
    A('v_mul_u32_u24 v16, 288, v16')
    A('v_and_b32 v17, 3, v14')
    A('v_lshl_add_u32 v16, v17, 3, v16')
    A('v_add_u32 v16, s8, v16')
    A('v_lshlrev_b32 v17, 4, v2')
    A('s_mul_i32 s6, s18, 9')
    A('s_lshl_b32 s7, s19, 2')
    A('s_add_u32 s7, s7, s22')
    A('s_waitcnt lgkmcnt(0)')
    for tb in range(9):
        for hf in range(2):
            A('ds_read_b64_tr_b16 %s, v16 offset:%d', v(56 + 4 * tb + 2 * hf, 2), 4 * 288 * hf + 32 * tb)
    for tb in range(9):
        g_soff(A, 's46', tb, 's7')
        n_after = 2 * (8 - tb)
        if n_after < 15: A('s_waitcnt lgkmcnt(%d)', n_after)
        A('buffer_store_dwordx4 %s, v17, s[36:39], s46 offen', v(56 + 4 * tb, 4))

for gw in range(1024): assert (gw * 3277) >> 16 == gw // 20
for l in range(256): assert (l * 1093) >> 16 == l // 60
for l in range(76): assert (l * 13108) >> 16 == l // 5
for d in range(52): assert d >= 40 or (d * 52) >> 8 == d // 5
```

```python
from asmlib import *
from layout import *

def gen_k2(A, name='k2_kernel', DEPTH=6, stamps=False, exp=''):
    NW = 4
    STEPS = KS2 // NW
    kernel_begin(A, name)
    A('s_cmp_ge_u32 s2, 256')
    A('s_cbranch_scc1 %s_end', name)
    if stamps:
        A('s_memtime s[40:41]')
        A('s_memrealtime s[50:51]')
    A('s_load_dwordx2 s[10:11], s[0:1], 120')
    A('s_load_dwordx2 s[4:5], s[0:1], 0')
    A('s_load_dwordx2 s[6:7], s[0:1], 64')
    A('s_load_dwordx2 s[8:9], s[0:1], 104')
    A('v_lshrrev_b32 v1, 6, v0')
    A('v_and_b32 v2, 63, v0')
    A('v_readfirstlane_b32 s30, v1')
    A('v_lshlrev_b32 v3, 4, v2')
    A('v_add_u32 v4, 0x1000, v3')
    A('s_and_b32 s33, s2, 7')
    A('s_lshr_b32 s34, s2, 3')
    A('s_lshr_b32 s35, s34, 3')
    A('s_lshl_b32 s28, s33, 2')
    A('s_add_u32 s28, s28, s35')
    A('s_and_b32 s29, s34, 7')
    if 'M' in exp: A('s_mov_b32 s28, 0')
    if 'N' in exp: A('s_mov_b32 s29, 0')
    if 'X' in exp:
        A('s_lshr_b32 s35, s33, 1')
        A('s_lshl_b32 s28, s35, 3')
        A('s_lshr_b32 s35, s34, 2')
        A('s_add_u32 s28, s28, s35')
        A('s_and_b32 s35, s33, 1')
        A('s_lshl_b32 s29, s35, 2')
        A('s_and_b32 s35, s34, 3')
        A('s_add_u32 s29, s29, s35')
    if 'R' in exp:
        A('s_lshr_b32 s28, s2, 3')
        A('s_and_b32 s29, s2, 7')
    A('s_mul_i32 s33, s30, %d', STEPS)
    A('s_mul_i32 s31, s28, %d', KS2)
    A('s_add_u32 s31, s31, s33')
    A('s_lshl_b32 s31, s31, 12')
    A('s_mul_i32 s32, s29, %d', KS2)
    A('s_add_u32 s32, s32, s33')
    A('s_mul_i32 s32, s32, 5120')
    A('s_add_u32 s32, s32, 0x%x', W2_OFF)
    import re
    mrot = re.search(r'rot(\d+)_(\d+)', exp)
    if mrot:
        ra, rb = int(mrot.group(1)), int(mrot.group(2))
        A('s_mul_i32 s37, s29, %d', ra)
        A('s_and_b32 s38, s28, 3')
        A('s_mul_i32 s38, s38, %d', rb)
        A('s_add_u32 s37, s37, s38')
        for _ in range(3):
            A('s_sub_u32 s38, s37, %d', STEPS)
            A('s_cmp_ge_u32 s37, %d', STEPS)
            A('s_cselect_b32 s37, s38, s37')
        A('s_lshl_b32 s38, s37, 12')
        A('s_add_u32 s31, s31, s38')
        A('s_mul_i32 s38, s37, 5120')
        A('s_add_u32 s32, s32, s38')
    A('s_waitcnt lgkmcnt(0)')
    srd(A, 12, 10, WS_USED)
    srd(A, 16, 4, L * D * 2)
    srd(A, 20, 6, D * 2)
    srd(A, 24, 8, L * D * 4)
    BUF0 = 40
    def gbuf(b, mb): return BUF0 + b * 36 + mb * 4
    def wbuf(b, nb): return BUF0 + b * 36 + 16 + nb * 4
    def issue(step):
        b = step % DEPTH
        for nb in range(5):
            if nb < 4:
                A('buffer_load_dwordx4 %s, v3, s[12:15], s32 offen offset:%d', v(wbuf(b, nb), 4), nb * 1024)
            else:
                A('buffer_load_dwordx4 %s, v4, s[12:15], s32 offen', v(wbuf(b, nb), 4))
        for mb in range(4):
            A('buffer_load_dwordx4 %s, v3, s[12:15], s31 offen offset:%d', v(gbuf(b, mb), 4), mb * 1024)
        if mrot:
            A('s_add_u32 s37, s37, 1')
            A('s_cmp_eq_u32 s37, %d', STEPS)
            A('s_cselect_b32 s38, %d, 1', 1 - STEPS)
            A('s_lshl_b32 s39, s38, 12')
            A('s_add_u32 s31, s31, s39')
            A('s_mul_i32 s39, s38, 5120')
            A('s_add_u32 s32, s32, s39')
        else:
            A('s_add_u32 s31, s31, 4096')
            A('s_add_u32 s32, s32, 5120')
    for st in range(DEPTH):
        issue(st)
    for i in range(80):
        A('v_accvgpr_write_b32 a%d, 0', i)
    A('v_and_b32 v5, 15, v2')
    A('v_lshrrev_b32 v6, 4, v2')
    A('s_lshl_b32 s33, s28, 6')
    A('s_lshl_b32 s34, s30, 4')
    A('s_add_u32 s33, s33, s34')
    A('v_add_u32 v5, s33, v5')
    A('s_mul_i32 s34, s29, 80')
    A('v_lshlrev_b32 v6, 2, v6')
    A('v_add_u32 v6, s34, v6')
    A('v_mul_u32_u24 v7, 640, v5')
    A('v_add_u32 v7, v7, v6')
    A('v_lshlrev_b32 v8, 1, v7')
    A('v_lshlrev_b32 v9, 2, v7')
    A('v_lshlrev_b32 v10, 1, v6')
    A('v_lshlrev_b32 v11, 3, v5')
    A('s_mov_b32 s36, 0x%x', ST_OFF)
    if stamps:
        A('s_waitcnt vmcnt(%d)', 9 * (DEPTH - 1))
        A('s_memtime s[42:43]')
    NRES = 11
    res_issued = False
    for st in range(STEPS):
        b = st % DEPTH
        younger = 9 * (min(STEPS, st + DEPTH) - st - 1)
        if res_issued:
            younger += NRES
        A('s_waitcnt vmcnt(%d)', min(younger, 63))
        for mb in range(4):
            for nb in range(5):
                acc = (mb * 5 + nb) * 4
                A('v_mfma_f32_16x16x32_bf16 %s, %s, %s, %s', a(acc, 4), v(wbuf(b, nb), 4), v(gbuf(b, mb), 4), a(acc, 4))
        if st + DEPTH < STEPS:
            issue(st + DEPTH)
        elif not res_issued:
            for nb in range(5):
                A('buffer_load_dwordx2 %s, v8, s[16:19], 0 offen offset:%d', v(16 + 2 * nb, 2), nb * 32)
            for nb in range(5):
                A('buffer_load_dwordx2 %s, v10, s[20:23], 0 offen offset:%d', v(26 + 2 * nb, 2), nb * 32)
            A('buffer_load_dwordx2 v[36:37], v11, s[12:15], s36 offen')
            res_issued = True
    if stamps:
        A('s_memtime s[44:45]')
    A('s_mul_i32 s33, s30, 20480')
    A('v_add_u32 v12, s33, v3')
    A('s_mul_i32 s34, s30, 5120')
    A('v_add_u32 v13, s34, v3')
    A('v_add_u32 v15, 40960, v13')
    A('s_nop 7')
    for mb in range(4):
        for nb in range(5):
            acc = (mb * 5 + nb) * 4
            A('ds_write_b128 v12, %s offset:%d', a(acc, 4), (mb * 5 + nb) * 1024)
    A('s_waitcnt lgkmcnt(0)')
    A('s_barrier')
    R0 = BUF0
    for ws_ in range(4):
        for nb in range(5):
            A('ds_read_b128 %s, %s offset:%d', v(R0 + (ws_ * 5 + nb) * 4, 4), 'v13' if ws_ < 2 else 'v15', (ws_ & 1) * 20480 + nb * 1024)
    A('s_waitcnt vmcnt(0)')
    T = R0 + 80
    for nb in range(5):
        x0, x1 = 16 + 2 * nb, 17 + 2 * nb
        d0, d1 = 26 + 2 * nb, 27 + 2 * nb
        o = T + nb * 4
        t = T + 20
        A('v_lshlrev_b32 %s, 16, %s', v(o), v(x0))
        A('v_and_b32 %s, 0xffff0000, %s', v(o + 1), v(x0))
        A('v_lshlrev_b32 %s, 16, %s', v(o + 2), v(x1))
        A('v_and_b32 %s, 0xffff0000, %s', v(o + 3), v(x1))
        for i in range(4):
            A('v_sub_f32 %s, %s, v36', v(t + i), v(o + i))
        A('v_cvt_pk_bf16_f32 %s, %s, %s', v(t + 4), v(t), v(t + 1))
        A('v_cvt_pk_bf16_f32 %s, %s, %s', v(t + 5), v(t + 2), v(t + 3))
        A('v_lshlrev_b32 %s, 16, %s', v(t), v(t + 4))
        A('v_and_b32 %s, 0xffff0000, %s', v(t + 1), v(t + 4))
        A('v_lshlrev_b32 %s, 16, %s', v(t + 2), v(t + 5))
        A('v_and_b32 %s, 0xffff0000, %s', v(t + 3), v(t + 5))
        for i in range(4):
            A('v_mul_f32 %s, %s, v37', v(t + i), v(t + i))
        A('v_cvt_pk_bf16_f32 %s, %s, %s', v(t + 4), v(t), v(t + 1))
        A('v_cvt_pk_bf16_f32 %s, %s, %s', v(t + 5), v(t + 2), v(t + 3))
        A('v_lshlrev_b32 %s, 16, %s', v(t), v(t + 4))
        A('v_and_b32 %s, 0xffff0000, %s', v(t + 1), v(t + 4))
        A('v_lshlrev_b32 %s, 16, %s', v(t + 2), v(t + 5))
        A('v_and_b32 %s, 0xffff0000, %s', v(t + 3), v(t + 5))
        A('v_lshlrev_b32 %s, 16, %s', v(t + 4), v(d0))
        A('v_and_b32 %s, 0xffff0000, %s', v(t + 5), v(d0))
        A('v_lshlrev_b32 %s, 16, %s', v(t + 6), v(d1))
        A('v_and_b32 %s, 0xffff0000, %s', v(t + 7), v(d1))
        for i in range(4):
            A('v_mul_f32 %s, %s, %s', v(t + i), v(t + i), v(t + 4 + i))
        A('v_cvt_pk_bf16_f32 %s, %s, %s', v(t + 4), v(t), v(t + 1))
        A('v_cvt_pk_bf16_f32 %s, %s, %s', v(t + 5), v(t + 2), v(t + 3))
        A('v_lshlrev_b32 %s, 16, %s', v(t), v(t + 4))
        A('v_and_b32 %s, 0xffff0000, %s', v(t + 1), v(t + 4))
        A('v_lshlrev_b32 %s, 16, %s', v(t + 2), v(t + 5))
        A('v_and_b32 %s, 0xffff0000, %s', v(t + 3), v(t + 5))
        for i in range(4):
            A('v_add_f32 %s, %s, %s', v(o + i), v(o + i), v(t + i))
    A('s_waitcnt lgkmcnt(0)')
    for nb in range(5):
        o = T + nb * 4
        for i in range(4):
            r = lambda w_: R0 + (w_ * 5 + nb) * 4 + i
            A('v_add_f32 %s, %s, %s', v(r(0)), v(r(0)), v(r(1)))
            A('v_add_f32 %s, %s, %s', v(r(2)), v(r(2)), v(r(3)))
            A('v_add_f32 %s, %s, %s', v(o + i), v(o + i), v(r(0)))
            A('v_add_f32 %s, %s, %s', v(o + i), v(o + i), v(r(2)))
        A('buffer_store_dwordx4 %s, v9, s[24:27], 0 offen offset:%d', v(o, 4), nb * 64)
    if stamps:
        A('s_waitcnt vmcnt(0)')
        A('s_memtime s[46:47]')
        A('s_memrealtime s[48:49]')
        A('s_waitcnt lgkmcnt(0)')
        A('s_lshl_b32 s33, s2, 2')
        A('s_add_u32 s33, s33, s30')
        A('s_lshl_b32 s33, s33, 6')
        A('s_add_u32 s33, s33, 0x%x', DBG_OFF)
        for i in range(12):
            A('v_mov_b32 %s, %s', v(16 + i), s(40 + i))
        A('v_mov_b32 v14, 0')
        A('buffer_store_dwordx4 v[16:19], v14, s[12:15], s33 offen')
        A('buffer_store_dwordx4 v[20:23], v14, s[12:15], s33 offen offset:16')
        A('buffer_store_dwordx4 v[24:27], v14, s[12:15], s33 offen offset:32')
    A.label('%s_end' % name)
    A('s_endpgm')
    nv = max(BUF0 + DEPTH * 36, T + 28)
    accum = (nv + 3) // 4 * 4
    return dict(vgpr=accum + 80, sgpr=56, accum=accum, lds=81920)

if __name__ == '__main__':
    import sys
    depth = int(sys.argv[1]) if len(sys.argv) > 1 else 6
    A = Asm()
    A.lines.append('; @launch kernel=k2_kernel grid=(256,1,1) block=(256,1,1) lds=81920')
    A('.amdgcn_target "amdgcn-amd-amdhsa--gfx950"')
    r = gen_k2(A, DEPTH=depth, stamps=True, exp=sys.argv[3] if len(sys.argv) > 3 else '')
    kernel_desc(A, 'k2_kernel', r['vgpr'], r['sgpr'], r['accum'])
    open(sys.argv[2] if len(sys.argv) > 2 else 'k2.s', 'w').write(A.text())
```

```python
L, D, P, F = 2048, 640, 640, 1536
KS2 = 88
G_OFF = 0
G_BYTES = 32 * KS2 * 4096
W2_OFF = G_BYTES
W2_BYTES = 8 * KS2 * 5120
ST_OFF = W2_OFF + W2_BYTES
ST_BYTES = 2160 * 8 + 128
CS_OFF = ST_OFF + 0x5000
CS_BYTES = 4352 * 4
SC_OFF = CS_OFF + 0x5000
WS_USED = 16 << 20
DBG_OFF = 15 << 20

def k2_kmap():
    import numpy as np
    km = np.zeros((KS2, 4, 8), dtype=np.int64)
    for ks in range(40):
        for kq in range(4):
            for j in range(8):
                km[ks, kq, j] = (0 if kq < 2 else 640) + 16 * ks + 8 * (kq & 1) + j
    for ks in range(40, KS2):
        for kq in range(4):
            for j in range(8):
                km[ks, kq, j] = 1280 + 32 * (ks - 40) + 16 * (j >> 2) + 4 * kq + (j & 3)
    return km

def pack_G(Gm):
    import numpy as np
    km = k2_kmap()
    g = Gm[:, km]
    g = g.reshape(32, 4, 16, KS2, 4, 8)
    g = g.transpose(0, 3, 1, 4, 2, 5)
    return np.ascontiguousarray(g).reshape(-1)

def unpack_G(flat):
    import numpy as np
    km = k2_kmap()
    g = flat.reshape(32, KS2, 4, 4, 16, 8).transpose(0, 2, 4, 1, 3, 5).reshape(2048, KS2, 4, 8)
    out = np.zeros((2048, 2816), dtype=flat.dtype)
    out[:, km] = g
    return out

def pack_W2(W2t):
    import numpy as np
    km = k2_kmap()
    w = W2t[:, km]
    w = w.reshape(8, 5, 16, KS2, 4, 8).transpose(0, 3, 1, 4, 2, 5)
    return np.ascontiguousarray(w).reshape(-1)
```

```python
import sys
from asmlib import *
from layout import *
import gen_k1, gen_k2
def header():
    ref = open('parallel_sum__ssm_conv_s5__geglu_ffn__prompt.s.ref').read().split('\n')
    out = []
    for l in ref:
        if l.startswith('; Override'): break
        out.append(l)
    return out
def build(out, stamps=False, k2exp='X', depth=4):
    A = Asm()
    A.lines += header()
    A.lines.append('; @launch kernel=k1_kernel grid=(256,1,1) block=(512,1,1) lds=%d' % gen_k1.LDS_K1)
    A.lines.append('; @launch kernel=k2_kernel grid=(256,1,1) block=(256,1,1) lds=81920')
    A('.amdgcn_target "amdgcn-amd-amdhsa--gfx950"')
    r1 = gen_k1.gen_k1(A, stamps=stamps)
    r2 = gen_k2.gen_k2(A, DEPTH=depth, stamps=False, exp=k2exp)
    kernel_desc(A, 'k1_kernel', r1['vgpr'], r1['sgpr'], r1['accum'])
    kernel_desc(A, 'k2_kernel', r2['vgpr'], r2['sgpr'], r2['accum'])
    open(out, 'w').write(A.text())
if __name__ == '__main__':
    build(sys.argv[1], stamps='S' in (sys.argv[2] if len(sys.argv) > 2 else ''))
```

```python
import sys, struct
from asmlib import *
from layout import *

STAGE = 51200
NSTG = 10
XL = 3 * STAGE
T_FFN = XL
T_M = XL + 2304
T_R = XL + 2880
T_CS = XL + 3456
LDS_K1 = XL + 4608
TRB = STAGE
def f2u(x): return struct.unpack('<I', struct.pack('<f', x))[0]
C1 = -2.0 * 0.7978845608028654 * 1.4426950408889634
C2 = C1 * 0.044715
PX, PLRE, PLIM, PBRE, PBIM, PCRE, PCIM, PLDT, PDSK, PBX, PWG, PWU, PWD, POUT, PDBG, PWS = [64 + 2 * i for i in range(16)]
ACC = 100
def acc(rb, c, r=0): return ACC + (rb * 4 + c) * 4 + r

def gen_k1(A, name='k1_kernel', stamps=False, trace=False):
    N = name
    kernel_begin(A, N)
    def tr(k, vt):
        if not trace: return
        A('s_memtime s[96:97]')
        A('s_waitcnt lgkmcnt(0)')
        if isinstance(k, str):
            A('s_mov_b32 s98, m0')
            A('s_add_u32 m0, %s, 4', k)
            A('v_writelane_b32 v%d, s96, m0', vt)
            A('s_mov_b32 m0, s98')
        else:
            A('v_writelane_b32 v%d, s96, %d', vt, k)
    def tr_store(vt, base):
        if not trace: return
        A('s_lshl_b32 s44, s3, 2')
        A('s_add_u32 s44, s44, s22')
        A('s_lshl_b32 s44, s44, 8')
        A('s_add_u32 s44, s44, 0x%x', base)
        A('v_lshlrev_b32 v1, 2, v2')
        A('buffer_store_dword v%d, v1, s[28:31], s44 offen', vt)
    A.tr = tr
    A('s_cmp_ge_u32 s2, 256')
    A('s_cbranch_scc1 %s_end', N)
    A('s_load_dwordx16 s[64:79], s[0:1], 0')
    A('s_load_dwordx16 s[80:95], s[0:1], 64')
    if stamps or trace:
        A('s_memtime s[48:49]')
        A('s_memrealtime s[100:101]')
        A('v_mov_b32 v253, 0')
    A('v_lshrrev_b32 v1, 6, v0')
    A('v_and_b32 v2, 63, v0')
    A('v_readfirstlane_b32 s21, v1')
    A('s_and_b32 s3, s2, 7')
    A('s_lshl_b32 s3, s3, 5')
    A('s_lshr_b32 s16, s2, 3')
    A('s_add_u32 s3, s3, s16')
    A('s_cmp_ge_u32 s3, 255')
    A('s_cbranch_scc1 %s_end', N)
    A('s_mul_i32 s16, s3, 1093')
    A('s_lshr_b32 s16, s16, 16')
    A('s_mul_i32 s17, s16, 60')
    A('s_sub_u32 s17, s3, s17')
    A('s_lshr_b32 s18, s17, 2')
    A('s_and_b32 s19, s17, 3')
    A('s_lshl_b32 s16, s16, 2')
    A('s_add_u32 s19, s19, s16')
    A('s_sub_u32 s17, s3, 180')
    A('s_mul_i32 s16, s17, 13108')
    A('s_lshr_b32 s16, s16, 16')
    A('s_mul_i32 s20, s16, 5')
    A('s_sub_u32 s20, s17, s20')
    A('s_add_u32 s20, s20, 12')
    A('s_cmp_ge_u32 s3, 180')
    A('s_cselect_b32 s18, s16, s18')
    A('s_cselect_b32 s19, s20, s19')
    A('s_cmp_lt_u32 s19, 10')
    A('s_cselect_b32 s20, 1, 0')
    A('s_and_b32 s22, s21, 3')
    A('s_and_b32 s16, s22, 1')
    A('s_lshr_b32 s17, s22, 1')
    A('v_lshrrev_b32 v5, 4, v2')
    A('s_cmp_lt_u32 s21, 4')
    A('s_cbranch_scc1 %s_comp', N)

    A('s_and_b32 s23, s20, s17')
    A('v_lshrrev_b32 v3, 3, v2')
    A('v_and_b32 v4, 7, v2')
    A('v_xor_b32 v6, v4, v5')
    A('v_xor_b32 v7, 4, v6')
    A('v_lshrrev_b32 v12, 5, v2')
    A('v_mul_u32_u24 v12, 36, v12')
    A('v_and_b32 v13, 3, v3')
    A('v_add_u32 v12, v12, v13')
    A('s_mul_i32 s44, s16, 72')
    A('s_lshl_b32 s45, s17, 2')
    A('s_add_u32 s44, s44, s45')
    A('s_lshl_b32 s45, s22, 3')
    A('s_cmp_eq_u32 s20, 1')
    A('s_cselect_b32 s44, s44, s45')
    A('s_cselect_b64 vcc, -1, 0')
    A('s_mov_b32 s45, 40960')
    A('s_cselect_b32 s55, 10240, s45')
    A('s_mul_i32 s45, s18, 144')
    A('s_add_u32 s44, s44, s45')
    A('v_cndmask_b32 v12, v3, v12, vcc')
    A('v_add_u32 v12, s44, v12')
    A('v_mul_u32_u24 v12, 1280, v12')
    A('s_cmp_eq_u32 s16, 1')
    A('s_cselect_b64 vcc, -1, 0')
    A('v_bfe_u32 v8, v2, 4, 1')
    A('v_lshlrev_b32 v8, 1, v8')
    A('v_cndmask_b32 v13, v6, v7, vcc')
    A('v_lshl_add_u32 v18, v13, 4, v12')
    A('v_xor_b32 v8, v4, v8')
    A('v_xor_b32 v9, 4, v8')
    A('v_mul_u32_u24 v12, 1280, v3')
    A('v_mul_u32_u24 v13, 3072, v3')
    A('v_lshl_add_u32 v14, v6, 4, v12')
    A('v_lshl_add_u32 v15, v7, 4, v12')
    A('v_lshl_add_u32 v16, v8, 4, v13')
    A('v_lshl_add_u32 v17, v9, 4, v13')
    A('s_cmp_eq_u32 s23, 1')
    A('s_cselect_b64 vcc, -1, 0')
    A('s_mov_b32 s44, %d', D * F * 2)
    A('s_cselect_b32 s34, %d, s44', P * D * 2)
    A('s_mov_b32 s44, %d', 8 * 3072 - 1024)
    A('s_cselect_b32 s56, %d, s44', 8 * 1280 - 1024)
    A('s_mov_b32 s44, %d', 64 * 3072)
    A('s_cselect_b32 s57, 128, s44')
    A('v_cndmask_b32 v10, v16, v14, vcc')
    A('v_cndmask_b32 v11, v17, v15, vcc')
    A('s_lshl_b32 s44, s19, 1')
    A('s_sub_u32 s44, s44, 10')
    A('s_add_u32 s44, s44, s17')
    A('s_cmp_eq_u32 s20, 1')
    A('s_cselect_b32 s44, s19, s44')
    A('s_lshl_b32 s44, s44, 7')
    A('s_mul_i32 s45, s19, %d', 64 * 1280)
    A('s_cmp_eq_u32 s23, 1')
    A('s_cselect_b32 s59, s45, s44')
    A('s_mov_b32 s58, 0')
    A('s_mov_b32 s60, 0')
    A('s_lshl_b32 s61, s22, 10')
    A('s_lshl_b32 s62, s22, 13')
    A('s_add_u32 s62, s62, 18432')
    A('s_mov_b32 s35, 0x00020000')
    A('s_mov_b32 s26, 0x%x', L * D * 2)
    A('s_mov_b32 s27, 0x00020000')
    A('s_waitcnt lgkmcnt(0)')
    if trace: A('v_writelane_b32 v253, s48, 0')
    tr(1, 253)
    A('s_mov_b32 s24, %s', s(PX))
    A('s_mov_b32 s25, %s', s(PX + 1))
    A('s_cmp_eq_u32 s16, 0')
    A('s_cselect_b64 s[44:45], %s, %s', s(PWG, 2), s(PWU, 2))
    A('s_cselect_b64 s[46:47], %s, %s', s(PBRE, 2), s(PBIM, 2))
    A('s_cmp_eq_u32 s23, 1')
    A('s_cselect_b64 s[32:33], s[46:47], s[44:45]')

    def dma():
        for n in range(5):
            if n == 0:
                A('s_add_u32 m0, s60, s61'); A('s_mov_b32 s63, s58')
            else:
                A('s_add_u32 m0, m0, 4096'); A('s_add_u32 s63, s63, s55')
            if n == 4:
                lb = A.newlabel(N + '_skA')
                A('s_cmp_ge_u32 s22, 2')
                A('s_cbranch_scc1 %s', lb)
                A('buffer_load_dwordx4 v18, s[24:27], s63 offen lds')
                A.label(lb)
            else:
                A('buffer_load_dwordx4 v18, s[24:27], s63 offen lds')
        for i in range(8):
            if i == 0:
                A('s_add_u32 m0, s60, s62'); A('s_mov_b32 s63, s59')
            elif i == 4:
                A('s_add_u32 m0, m0, 4096'); A('s_add_u32 s63, s63, s56'); A('s_add_u32 s63, s63, 4096')
            else:
                A('s_add_u32 s63, s63, s56')
            A('buffer_load_dwordx4 %s, s[32:35], s63 offen offset:%d lds', 'v10' if i % 2 == 0 else 'v11', (i % 4) * 1024)
        A('s_add_u32 s58, s58, 128')
        A('s_add_u32 s59, s59, s57')
        A('s_add_u32 s60, s60, %d', STAGE)
        A('s_cmp_eq_u32 s60, %d', 3 * STAGE)
        A('s_cselect_b32 s60, 0, s60')
    A('s_mov_b32 s54, 0')
    A.label(N + '_hpro')
    dma()
    A('s_add_u32 s54, s54, 1')
    A('s_cmp_lt_u32 s54, 3')
    A('s_cbranch_scc1 %s_hpro', N)
    tr(2, 253)

    def frag_addrs():
        A('v_and_b32 v12, 15, v2')
        A('v_bfe_u32 v13, v2, 1, 3')
        A('v_xor_b32 v13, v5, v13')
        A('v_lshlrev_b32 v13, 4, v13')
        A('v_lshl_add_u32 v20, v12, 7, v13')
        A('v_xor_b32 v21, 64, v20')
        A('v_lshrrev_b32 v13, 2, v12')
        A('v_lshl_add_u32 v13, v5, 3, v13')
        A('v_lshlrev_b32 v13, 7, v13')
        A('v_and_b32 v14, 3, v2')
        A('v_lshl_add_u32 v13, v14, 3, v13')
        A('v_bfe_u32 v14, v2, 3, 2')
        A('s_lshl_b32 s44, s16, 1')
        A('s_lshl_b32 s45, s17, 14')
        A('s_cmp_eq_u32 s20, 1')
        A('s_cselect_b32 s44, s22, s44')
        A('s_cselect_b32 s45, 0, s45')
        A('s_add_u32 s45, s45, 18432')
        A('v_xor_b32 v15, s44, v14')
        A('v_lshl_add_u32 v22, v15, 5, v13')
        A('v_add_u32 v22, s45, v22')
        A('v_xor_b32 v23, 32, v22')
        A('s_lshl_b32 s44, s22, 11')
        A('s_add_u32 s44, s44, %d', 18432 + 16384)
        A('v_add_u32 v24, s44, v20')
        A('v_add_u32 v25, s44, v21')
    frag_addrs()
    A('s_lshl_b32 s44, s22, 12')
    A('v_add_u32 v36, s44, v20')
    A('v_add_u32 v37, s44, v21')
    srd(A, 28, PWS, WS_USED)
    for i in range(40, 50): A('v_mov_b32 v%d, 0', i)
    A('v_mov_b32 v50, 0x7f000000')
    A('v_mov_b32 v51, 0x7f000000')
    A('s_mov_b32 s52, 0x3f803f80')
    A('s_mov_b32 s53, 0')
    A('s_mov_b32 s54, 0')
    A('s_waitcnt vmcnt(24)')
    tr(3, 253)
    A('s_barrier')
    A.label(N + '_hloop')
    tr('s54', 253)
    lb = A.newlabel(N + '_h')
    A('s_cmp_eq_u32 s54, 0')
    A('s_cbranch_scc1 %s_sideA', N)
    A('s_cmp_ge_u32 s54, 8')
    A('s_cbranch_scc1 %s_hstats', N)
    A('s_cmp_eq_u32 s54, 3')
    A('s_cbranch_scc1 %s_sideB', N)
    A.label(N + '_hdma')
    dma()
    A.label(N + '_hstats')
    for i, b in enumerate((36, 37, 22, 23, 24, 25, 20, 21)):
        A('v_add_u32 v%d, s53, v%d', 26 + i, b)
    DA = 64
    for k in range(2):
        for ss in range(2):
            A('ds_read_b128 %s, v%d offset:%d', v(DA + (k * 2 + ss) * 4, 4), 26 + ss, k * 2048)
    lq = A.newlabel(N + '_hq'); lj = A.newlabel(N + '_hj')
    A('s_cmp_eq_u32 s20, 1')
    A('s_cbranch_scc1 %s', lq)
    DB = 80
    def bdat(c, ss): return DB + (c * 2 + ss) * 4
    for m in range(2):
        for p in range(2):
            for ss in range(2):
                for hf in range(2):
                    A('ds_read_b64_tr_b16 %s, v%d offset:%d', v(bdat(2 * m + p, ss) + 2 * hf, 2), 28 + p, m * 8192 + (32 * ss + 4 * hf) * 128)
    A('s_branch %s', lj)
    A.label(lq)
    for m in range(2):
        for ss in range(2):
            for hf in range(2):
                A('ds_read_b64_tr_b16 %s, v28 offset:%d', v(bdat(m, ss) + 2 * hf, 2), m * 8192 + (32 * ss + 4 * hf) * 128)
    for m in range(2):
        for ss in range(2):
            A('ds_read_b128 %s, v%d offset:%d', v(bdat(2 + m, ss), 4), 30 + ss, m * 8192)
    A.label(lj)
    A('s_waitcnt lgkmcnt(12)')
    for i in range(8):
        for k in range(2):
            A('v_dot2c_f32_bf16 v%d, s52, v%d', 40 + k, DA + k * 8 + i)
            A('v_dot2c_f32_bf16 v%d, v%d, v%d', 42 + k, DA + k * 8 + i, DA + k * 8 + i)
    l8 = A.newlabel(N + '_h8')
    A('s_cmp_lg_u32 s22, 3')
    A('s_cbranch_scc1 %s', l8)
    for ss in range(2):
        A('ds_read_b128 %s, v%d offset:16384', v(112 + ss * 4, 4), 32 + ss)
    A('s_waitcnt lgkmcnt(0)')
    for i in range(8):
        A('v_dot2c_f32_bf16 v44, s52, v%d', 112 + i)
        A('v_dot2c_f32_bf16 v45, v%d, v%d', 112 + i, 112 + i)
    A.label(l8)
    A('s_waitcnt lgkmcnt(0)')
    for i in range(8):
        for c in range(4):
            A('v_dot2c_f32_bf16 v%d, s52, v%d', 46 + c, DB + c * 8 + i)
    A('s_add_u32 s53, s53, %d', STAGE)
    A('s_cmp_eq_u32 s53, %d', 3 * STAGE)
    A('s_cselect_b32 s53, 0, s53')
    A('s_cmp_eq_u32 s54, 9')
    A('s_cbranch_scc1 %s_hfin', N)
    w0 = A.newlabel(N + '_w'); wd = A.newlabel(N + '_w')
    A('s_cmp_eq_u32 s54, 8')
    A('s_cbranch_scc1 %s', w0)
    A('s_waitcnt vmcnt(22)')
    A('s_cmp_lt_u32 s54, 2')
    A('s_cbranch_scc1 %s', wd)
    A('s_waitcnt vmcnt(12)')
    A('s_branch %s', wd)
    A.label(w0)
    A('s_waitcnt vmcnt(0)')
    A.label(wd)
    A('s_add_u32 s54, s54, 1')
    A('s_barrier')
    A('s_branch %s_hloop', N)

    A.label(N + '_sideA')
    A('s_lshl_b32 s50, s3, 2')
    A('s_add_u32 s50, s50, s22')
    A('s_mul_i32 s44, s50, 3277')
    A('s_lshr_b32 s44, s44, 16')
    A('s_mul_i32 s45, s44, 20')
    A('s_sub_u32 s45, s50, s45')
    srd(A, 40, PWD, F * D * 2)
    A('v_and_b32 v12, 15, v2')
    A('v_mul_u32_u24 v13, %d, v5', 4 * 1280)
    A('v_lshl_add_u32 v13, v12, 2, v13')
    A('s_mul_i32 s46, s44, %d', 32 * 1280)
    A('s_lshl_b32 s47, s45, 6')
    A('s_add_u32 s46, s46, s47')
    A('s_add_u32 s47, s46, %d', 16 * 1280)
    for jj in range(8):
        A('buffer_load_dword v%d, v13, s[40:43], %s offen offset:%d', 120 + jj, 's46' if jj < 4 else 's47', (jj & 3) * 1280)
    A('v_lshrrev_b32 v14, 3, v12')
    A('s_lshl_b32 s47, s45, 1')
    A('v_add_u32 v14, s47, v14')
    A('v_mul_u32_u24 v15, 52, v14')
    A('v_lshrrev_b32 v15, 8, v15')
    A('v_mul_u32_u24 v16, 5, v15')
    A('v_sub_u32 v16, v14, v16')
    A('v_mul_u32_u24 v15, %d, v15', KS2 * 5)
    A('v_add_u32 v15, v15, v16')
    A('s_add_u32 s47, s44, 40')
    A('s_mul_i32 s47, s47, 5')
    A('v_add_u32 v15, s47, v15')
    A('v_lshlrev_b32 v15, 10, v15')
    A('v_lshl_add_u32 v15, v5, 8, v15')
    A('v_and_b32 v16, 7, v12')
    A('v_lshl_add_u32 v50, v16, 5, v15')
    A('s_cmp_lt_u32 s50, 960')
    A('s_cselect_b32 s47, 0, 0x7f000000')
    A('v_add_u32 v50, s47, v50')
    srd(A, 40, PCRE, D * P * 2)
    srd(A, 36, PCIM, D * P * 2)
    A('v_lshrrev_b32 v12, 2, v2')
    A('v_and_b32 v14, 3, v2')
    A('v_mul_u32_u24 v13, 1280, v12')
    A('v_lshl_add_u32 v13, v14, 4, v13')
    A('s_mul_i32 s46, s44, %d', 16 * 1280)
    A('s_lshl_b32 s47, s45, 6')
    A('s_add_u32 s46, s46, s47')
    A('buffer_load_dwordx4 v[128:131], v13, s[40:43], s46 offen')
    A('buffer_load_dwordx4 v[132:135], v13, s[36:39], s46 offen')
    A('s_mul_i32 s46, s44, 52')
    A('s_lshr_b32 s46, s46, 8')
    A('s_mul_i32 s47, s46, 5')
    A('s_sub_u32 s47, s44, s47')
    A('s_mul_i32 s46, s46, %d', KS2 * 5)
    A('s_add_u32 s46, s46, s47')
    A('s_mul_i32 s47, s45, 10')
    A('s_add_u32 s46, s46, s47')
    A('s_lshl_b32 s46, s46, 10')
    A('s_cmp_lt_u32 s50, 800')
    A('s_cselect_b32 s46, s46, 0x7f000000')
    A('v_lshrrev_b32 v15, 1, v14')
    A('v_mul_u32_u24 v15, 5120, v15')
    A('v_and_b32 v14, 1, v14')
    A('v_lshl_add_u32 v15, v14, 8, v15')
    A('v_lshl_add_u32 v15, v12, 4, v15')
    A('v_add_u32 v51, s46, v15')
    A('s_branch %s_hstats', N)

    A.label(N + '_sideB')
    A('s_mov_b32 s44, 0x05040100')
    A('s_mov_b32 s45, 0x07060302')
    for i in range(4):
        A('v_perm_b32 v%d, v%d, v%d, s44', 136 + i, 121 + 2 * i, 120 + 2 * i)
        A('v_perm_b32 v%d, v%d, v%d, s45', 140 + i, 121 + 2 * i, 120 + 2 * i)
    A('s_mov_b32 s46, 0x%x', W2_OFF)
    A('buffer_store_dwordx4 v[136:139], v50, s[28:31], s46 offen')
    A('buffer_store_dwordx4 v[140:143], v50, s[28:31], s46 offen offset:16')
    A('buffer_store_dwordx4 v[128:131], v51, s[28:31], s46 offen')
    A('buffer_store_dwordx4 v[132:135], v51, s[28:31], s46 offen offset:512')
    A('s_branch %s_hdma', N)

    A.label(N + '_hfin')
    srd(A, 40, PDBG, 256)
    A('s_lshl_b32 s51, s19, 2')
    A('s_add_u32 s51, s51, s22')
    A('s_lshl_b32 s51, s51, 2')
    A('s_lshl_b32 s46, 1, s18')
    A('s_sub_u32 s46, s46, 1')
    A('s_cmp_eq_u32 s20, 1')
    A('s_cselect_b32 s46, s46, 0')
    A('v_mov_b32 v55, 0')
    A('buffer_load_dword v56, v55, s[40:43], s51 offen sc1')
    vals = list(range(40, 50))
    def red(step):
        for i, x in enumerate(vals): A('v_mov_b32 v%d, v%d', 64 + i, x)
        A('s_nop 1')
        for i, x in enumerate(vals): A('v_permlane%d_swap_b32 v%d, v%d', step, x, 64 + i)
        A('s_nop 1')
        for i, x in enumerate(vals): A('v_add_f32 v%d, v%d, v%d', x, x, 64 + i)
    A('s_nop 2')
    red(32); red(16)
    A('v_and_b32 v12, 15, v2')
    A('s_lshl_b32 s44, s22, 8')
    A('s_add_u32 s44, s44, %d', T_CS)
    A('v_lshl_add_u32 v13, v12, 2, s44')
    for c in range(4):
        A('ds_write_b32 v13, v%d offset:%d', 46 + c, c * 64)
    A('v_lshrrev_b32 v14, 2, v12')
    A('v_mul_u32_u24 v14, 36, v14')
    A('v_and_b32 v15, 3, v12')
    A('v_add_u32 v14, v14, v15')
    A('s_cmp_eq_u32 s20, 1')
    A('s_cselect_b64 vcc, -1, 0')
    A('s_cselect_b32 s45, 4, 16')
    A('s_mov_b32 s44, 0x%x', ST_OFF)
    A('v_cndmask_b32 v14, v12, v14, vcc')
    A('s_cmp_eq_u32 s19, 0')
    A('s_cselect_b32 s47, s44, 0x7f000000')
    A('s_mul_i32 s44, s18, %d', 144 * 8)
    A('s_add_u32 s47, s47, s44')
    def rowstat(sx, sxx, srb):
        A('v_mul_f32 v64, 0x%x, v%d', f2u(1.0 / 640), sx)
        A('v_mul_f32 v65, 0x%x, v%d', f2u(1.0 / 640), sxx)
        A('v_fma_f32 v65, -v64, v64, v65')
        A('v_max_f32 v65, 0, v65')
        A('v_cvt_pk_bf16_f32 v66, v64, v65')
        A('v_lshlrev_b32 v68, 16, v66')
        A('v_and_b32 v65, 0xffff0000, v66')
        A('v_add_f32 v65, 0x%x, v65', f2u(1e-5))
        A('v_cvt_pk_bf16_f32 v66, v65, v65')
        A('v_lshlrev_b32 v65, 16, v66')
        A('v_sqrt_f32 v65, v65')
        A('s_mul_i32 s44, %s, s45', srb)
        A('v_cvt_pk_bf16_f32 v66, v65, v65')
        A('v_lshlrev_b32 v65, 16, v66')
        A('v_rcp_f32 v73, v65')
        A('v_mul_f32 v71, v65, v65')
        A('v_mov_b32 v72, v68')
        A('v_mul_f32 v69, 0x%x, v73', f2u(C1))
        A('v_mul_f32 v70, v73, v73')
        A('v_mul_f32 v70, v70, v73')
        A('v_mul_f32 v70, 0x%x, v70', f2u(C2))
        A('v_add_u32 v74, s44, v14')
        A('s_lshl_b32 s44, %s, 8', srb)
        A('s_add_u32 s44, s44, %d', T_FFN)
        A('v_lshl_add_u32 v75, v12, 4, s44')
        A('ds_write_b128 v75, v[68:71]')
        A('v_lshlrev_b32 v75, 2, v74')
        A('v_add_u32 v75, %d, v75', T_M)
        A('ds_write_b32 v75, v68')
        A('ds_write_b32 v75, v73 offset:%d', T_R - T_M)
        A('v_lshlrev_b32 v76, 3, v74')
        A('buffer_store_dwordx2 v[72:73], v76, s[28:31], s47 offen')
        A('s_nop 1')
    A('s_lshl_b32 s43, s22, 1') if False else None
    A('s_lshl_b32 s4, s22, 1')
    rowstat(40, 42, 's4')
    A('s_add_u32 s4, s4, 1')
    rowstat(41, 43, 's4')
    l8 = A.newlabel(N + '_f8')
    A('s_cmp_lg_u32 s22, 3')
    A('s_cbranch_scc1 %s', l8)
    A('s_mov_b32 s4, 8')
    rowstat(44, 45, 's4')
    A.label(l8)
    lp = A.newlabel(N + '_pl'); lo = A.newlabel(N + '_po')
    A('s_mov_b32 s5, 0')
    A.label(lp)
    A('s_waitcnt vmcnt(0)')
    A('v_readfirstlane_b32 s44, v56')
    A('s_and_b32 s44, s44, s46')
    A('s_cmp_eq_u32 s44, s46')
    A('s_cbranch_scc1 %s', lo)
    A('s_add_u32 s5, s5, 1')
    A('s_cmp_ge_u32 s5, 0x40000')
    A('s_cbranch_scc1 %s', lo)
    A('buffer_load_dword v56, v55, s[40:43], s51 offen sc1')
    A('s_branch %s', lp)
    A.label(lo)
    A('s_waitcnt lgkmcnt(0)')
    tr(14, 253)
    A('s_barrier')
    tr_store(253, DBG_OFF)
    A('s_endpgm')

    A.label(N + '_comp')
    A('s_setprio 2')
    frag_addrs()
    for i in range(6):
        A('v_mov_b32 %s, %s', v(26 + i), v(20 + i))
    A('s_waitcnt lgkmcnt(0)')
    if trace: A('v_writelane_b32 v253, s48, 0')
    srd(A, 28, PWS, WS_USED)
    srd(A, 36, PWS, G_BYTES)
    srd(A, 24, PLRE, P * 2)
    srd(A, 32, PLIM, P * 2)
    srd(A, 40, PLDT, P * 2)
    A('v_and_b32 v12, 15, v2')
    A('s_lshl_b32 s44, s19, 6')
    A('s_lshl_b32 s45, s22, 4')
    A('s_add_u32 s44, s44, s45')
    A('v_add_u32 v3, s44, v12')
    A('v_lshlrev_b32 v13, 1, v3')
    A('buffer_load_ushort v14, v13, s[24:27], 0 offen')
    A('buffer_load_ushort v15, v13, s[32:35], 0 offen')
    A('buffer_load_ushort v16, v13, s[40:43], 0 offen')
    A('s_mul_i32 s9, s18, 5120')
    A('s_add_u32 s9, s9, 0x%x', SC_OFF)
    A('s_cmp_eq_u32 s20, 1')
    A('s_cselect_b32 s46, s9, 0x7f000000')
    A('v_lshlrev_b32 v17, 3, v3')
    A('v_mov_b32 v244, -1')
    A('v_mov_b32 v245, -1')
    A('buffer_store_dwordx2 v[244:245], v17, s[28:31], s46 offen sc1')
    for i in range(144):
        A('v_mov_b32 v%d, 0', ACC + i)
    A('s_mov_b32 s53, 0')
    A('s_mov_b32 s54, 0')
    srd(A, 12, PDBG, 256)
    A('s_lshl_b32 s46, s19, 2')
    A('s_add_u32 s46, s46, s22')
    A('s_lshl_b32 s46, s46, 2')
    A('s_cmp_eq_u32 s20, 1')
    A('s_cselect_b32 s46, s46, 0x7f000000')
    A('s_lshl_b32 s47, 1, s18')
    A('v_mov_b32 v246, s47')
    A('v_lshlrev_b32 v247, 8, v2')
    A('s_waitcnt vmcnt(0)')
    tr(1, 253)
    A('buffer_atomic_or v246, v247, s[12:15], s46 offen sc1')
    A('v_lshlrev_b32 v14, 16, v14')
    A('v_lshlrev_b32 v15, 16, v15')
    A('v_lshlrev_b32 v16, 16, v16')
    A('v_mul_f32 v16, 0x%x, v16', f2u(1.4426950408889634))
    A('v_exp_f32 v16, v16')
    A('s_nop 0')
    A('v_cvt_pk_bf16_f32 v16, v16, v16')
    A('v_lshlrev_b32 v16, 16, v16')
    A('v_mul_f32 v6, v16, v14')
    A('v_mul_f32 v7, v16, v15')
    A('v_mul_f32 v6, 0x%x, v6', f2u(1.4426950408889634))
    A('v_mul_f32 v7, 0.15915494, v7')
    def cpow(dst, n_v=None, n_c=None, t0=244):
        if n_v is not None:
            A('v_mul_f32 v%d, v%d, v6', t0, n_v)
            A('v_mul_f32 v%d, v%d, v7', t0 + 1, n_v)
        elif n_c == 1:
            A('v_mov_b32 v%d, v6', t0)
            A('v_mov_b32 v%d, v7', t0 + 1)
        else:
            A('v_mul_f32 v%d, 0x%x, v6', t0, f2u(float(n_c)))
            A('v_mul_f32 v%d, 0x%x, v7', t0 + 1, f2u(float(n_c)))
        A('v_exp_f32 v%d, v%d', t0, t0)
        A('v_fract_f32 v%d, v%d', t0 + 1, t0 + 1)
        A('v_cos_f32 v%d, v%d', dst, t0 + 1)
        A('v_sin_f32 v%d, v%d', dst + 1, t0 + 1)
        A('s_nop 0')
        A('v_mul_f32 v%d, v%d, v%d', dst, dst, t0)
        A('v_mul_f32 v%d, v%d, v%d', dst + 1, dst + 1, t0)
    A('v_exp_f32 v244, v6')
    A('v_rndne_f32 v245, v7')
    A('v_sub_f32 v245, v7, v245')
    A('v_cos_f32 v8, v245')
    A('v_sin_f32 v9, v245')
    A('s_nop 0')
    A('v_mul_f32 v8, v8, v244')
    A('v_mul_f32 v9, v9, v244')
    A('v_sub_f32 v4, 0, v9')
    cpow(18, n_c=36)
    A('v_mul_f32 v244, v14, v14')
    A('v_fmac_f32 v244, v15, v15')
    A('v_rcp_f32 v244, v244')
    A('v_add_f32 v245, -1.0, v8')
    A('v_mul_f32 v10, v245, v14')
    A('v_fmac_f32 v10, v9, v15')
    A('v_mul_f32 v11, v9, v14')
    A('v_fma_f32 v11, -v245, v15, v11')
    A('v_add_f32 v244, v244, v244')
    A('v_mul_f32 v10, v10, v244')
    A('v_mul_f32 v11, v11, v244')

    def ra(rb): return 32 + rb * 4
    def rb_(st, c): return 68 + st * 16 + c * 4
    def breads(st, isq):
        ss = st; r = []
        if isq:
            for m in range(2):
                for hf in range(2):
                    r.append('ds_read_b64_tr_b16 %s, v28 offset:%d' % (v(rb_(st, m) + 2 * hf, 2), m * 8192 + (32 * ss + 4 * hf) * 128))
            for m in range(2):
                r.append('ds_read_b128 %s, %s offset:%d' % (v(rb_(st, 2 + m), 4), 'v30' if ss == 0 else 'v31', m * 8192))
        else:
            for m in range(2):
                for p in range(2):
                    for hf in range(2):
                        r.append('ds_read_b64_tr_b16 %s, %s offset:%d' % (v(rb_(st, 2 * m + p) + 2 * hf, 2), 'v28' if p == 0 else 'v29', m * 8192 + (32 * ss + 4 * hf) * 128))
        return r
    def aread(ss, rb):
        return 'ds_read_b128 %s, %s offset:%d' % (v(ra(rb), 4), 'v26' if ss == 0 else 'v27', rb * 2048)
    def mf(st, isq, rb, c):
        d = v(acc(rb, c), 4)
        if isq and c >= 2:
            return 'v_mfma_f32_16x16x32_bf16 %s, %s, %s, %s' % (d, v(ra(rb), 4), v(rb_(st, c), 4), d)
        return 'v_mfma_f32_16x16x32_bf16 %s, %s, %s, %s' % (d, v(rb_(st, c), 4), v(ra(rb), 4), d)
    def substep(st, isq, nxt, pend, defer=0, pre=(), mid=None):
        q = []
        pre = list(pre)
        bq = breads(1 - st, isq) if nxt else []
        started = (defer == 0)
        if started: q += [(l, 'B%d' % (1 - st)) for l in bq]
        for rb in range(9):
            if rb == defer and defer:
                for l in pre: A(l)
                pre = []
                mid(); pend[:] = []
                started = True
                q = q + [(l, 'B%d' % (1 - st)) for l in bq]
            need = [i for i, t in enumerate(pend) if t == 'A%d_%d' % (st, rb) or t == 'B%d' % st]
            if need:
                n_after = len(pend) - 1 - max(need)
                if n_after < 15: A('s_waitcnt lgkmcnt(%d)', n_after)
                del pend[:max(need) + 1]
            for c in range(4):
                A(mf(st, isq, rb, c))
                if not started:
                    for _ in range(2):
                        if pre: A(pre.pop(0))
                if started and q and c < 3:
                    l, t = q.pop(0); A(l); pend.append(t)
            if nxt:
                q.append((aread(1 - st, rb), 'A%d_%d' % (1 - st, rb)))
                if started:
                    l, t = q.pop(0); A(l); pend.append(t)
        while q:
            l, t = q.pop(0); A(l); pend.append(t)

    A('s_cmp_eq_u32 s20, 1')
    A('s_cbranch_scc1 %s_q', N)
    for isq in (False, True):
        tag = 'q' if isq else 'p'
        if isq: A.label('%s_q' % N)
        tr(2, 253)
        A('s_barrier')
        if stamps: A('s_memtime s[50:51]')
        for l in breads(0, isq): A(l)
        for rb in range(9): A(aread(0, rb))
        A('s_waitcnt lgkmcnt(0)')
        A.label('%s_loop_%s' % (N, tag))
        def body(pend):
            substep(0, isq, True, pend)
            A('s_add_u32 s54, s54, 1')
            A('s_cmp_eq_u32 s54, %d', NSTG)
            A('s_cbranch_scc1 %s_tail_%s', N, tag)
            tail_pend = list(pend)
            pre = ['s_add_u32 s53, s53, %d' % STAGE, 's_cmp_eq_u32 s53, %d' % (3 * STAGE), 's_cselect_b32 s53, 0, s53']
            pre += ['v_add_u32 %s, s53, %s' % (v(26 + i), v(20 + i)) for i in range(6) if isq and i != 3 or not isq and i < 4]
            def mid():
                A('s_waitcnt lgkmcnt(0)')
                A('s_barrier')
            substep(1, isq, True, pend, defer=2, pre=pre, mid=mid)
            return tail_pend
        mark = len(A.lines)
        p0 = []
        body(p0)
        del A.lines[mark:]
        p1 = list(p0)
        tail_pend = body(p1)
        assert p1 == p0
        A('s_branch %s_loop_%s', N, tag)
        A.label('%s_tail_%s' % (N, tag))
        substep(1, isq, False, tail_pend)
        if stamps: A('s_memtime s[56:57]')
        tr(3, 253)
        A('s_barrier')
        tr(4, 253)
        if stamps: A('s_memtime s[58:59]')
        if isq: epi_q(A, N, cpow, stamps)
        else: epi_p(A, N, stamps)
        if not isq: A('s_branch %s_fin', N)
    A.label(N + '_fin')
    if trace:
        tr(7, 253)
        A('s_waitcnt vmcnt(0)')
        tr(8, 253)
        A('s_memrealtime s[96:97]')
        A('s_waitcnt lgkmcnt(0)')
        A('v_writelane_b32 v253, s96, 15')
        A('v_writelane_b32 v253, s100, 14')
        tr_store(253, DBG_OFF + 0x40000)
    if stamps:
        A('s_waitcnt vmcnt(0)')
        A('s_memtime s[60:61]')
        A('s_memrealtime s[62:63]')
        A('s_waitcnt lgkmcnt(0)')
        A('s_lshl_b32 s44, s3, 2')
        A('s_add_u32 s44, s44, s22')
        A('s_lshl_b32 s44, s44, 6')
        A('s_add_u32 s44, s44, 0x%x', DBG_OFF)
        for i in range(16):
            A('v_mov_b32 %s, %s', v(32 + i), s(48 + i))
        A('v_mov_b32 v14, 0')
        for i in range(4):
            A('buffer_store_dwordx4 %s, v14, s[28:31], s44 offen offset:%d', v(32 + 4 * i, 4), 16 * i)
    A.label('%s_end' % N)
    A('s_endpgm')
    return dict(vgpr=256, sgpr=102, accum=256, lds=LDS_K1)

def pk(op, d, a_, b_, c_=None, sel=None, neg=None):
    srcs = [a_, b_] + ([c_] if c_ is not None else [])
    n = len(srcs)
    sel = sel or 'n' * n
    lo = [1 if x == 'h' else 0 for x in sel]
    hi = [0 if x == 'l' else 1 for x in sel]
    t = 'v_pk_%s_f32 %s, %s' % (op, v(d, 2), ', '.join(v(x, 2) for x in srcs))
    t += ' op_sel:[%s] op_sel_hi:[%s]' % (','.join(map(str, lo)), ','.join(map(str, hi)))
    if neg and any(neg):
        t += ' neg_lo:[%s] neg_hi:[%s]' % (','.join(map(str, neg)), ','.join(map(str, neg)))
    return t

def ffn_block(A, g, u, sg, su, st, tmp, out):
    t = tmp
    for h in (0, 2):
        A(pk('fma', g + h, st, sg + h, g + h, sel='lnn', neg=[1, 0, 0]))
    for h in (0, 2):
        A(pk('mul', t + h, g + h, g + h))
    for h in (0, 2):
        A(pk('fma', u + h, st, su + h, u + h, sel='lnn', neg=[1, 0, 0]))
    for h in (0, 2):
        A(pk('fma', t + h, t + h, st + 2, st, sel='nlh'))
    for h in (0, 2):
        A(pk('mul', t + h, t + h, g + h))
    for i in range(4):
        A('v_exp_f32 v%d, v%d', t + i, t + i)
    for h in (0, 2):
        A(pk('mul', g + h, g + h, u + h))
    for h in (0, 2):
        A(pk('fma', t + h, t + h, st + 2, st + 2, sel='nhh'))
    for i in range(4):
        A('v_rcp_f32 v%d, v%d', t + i, t + i)
    A('s_nop 0')
    for h in (0, 2):
        A(pk('mul', g + h, g + h, t + h))
    A('v_cvt_pk_bf16_f32 v%d, v%d, v%d', out, g, g + 1)
    A('v_cvt_pk_bf16_f32 v%d, v%d, v%d', out + 1, g + 2, g + 3)

def g_soff(A, dst, rb, ks_s):
    A('s_add_u32 s44, s6, %d', rb)
    A('s_lshr_b32 s45, s44, 2')
    A('s_mul_i32 s45, s45, %d', KS2)
    A('s_add_u32 s45, s45, %s', ks_s)
    A('s_lshl_b32 s45, s45, 2')
    A('s_and_b32 s44, s44, 3')
    A('s_add_u32 s45, s45, s44')
    A('s_lshl_b32 %s, s45, 10', dst)

def epi_p(A, N, stamps):
    A('s_lshl_b32 s44, s22, 8')
    A('s_add_u32 s44, s44, %d', T_CS)
    A('v_lshl_add_u32 v13, v5, 4, s44')
    for c in range(4):
        A('ds_read_b128 %s, v13 offset:%d', v(32 + 4 * c, 4), c * 64)
    A('v_and_b32 v12, 15, v2')
    A('v_lshlrev_b32 v12, 4, v12')
    A('v_add_u32 v12, %d, v12', T_FFN)
    for rb in range(9):
        A('ds_read_b128 %s, v12 offset:%d', v(48 + 4 * rb, 4), rb * 256)
    A('v_lshlrev_b32 v14, 4, v2')
    A('s_mul_i32 s6, s18, 9')
    A('s_lshl_b32 s7, s19, 2')
    A('s_add_u32 s7, s7, s22')
    A('s_add_u32 s7, s7, 20')
    for rb in range(9):
        A('s_waitcnt lgkmcnt(%d)', 8 - rb)
        o = 92 + (rb & 1) * 4
        for p in range(2):
            ffn_block(A, acc(rb, p), acc(rb, 2 + p), 32 + 4 * p, 40 + 4 * p, 48 + 4 * rb, 84 + 4 * p, o + 2 * p)
        g_soff(A, 's46', rb, 's7')
        A('buffer_store_dwordx4 %s, v14, s[36:39], s46 offen', v(o, 4))

def epi_q(A, N, cpow, stamps):
    A('v_and_b32 v14, 15, v2')
    A('s_lshl_b32 s44, s22, 8')
    A('s_add_u32 s44, s44, %d', T_CS + 128)
    A('v_lshl_add_u32 v15, v14, 2, s44')
    A('ds_read2_b32 v[12:13], v15 offset0:0 offset1:16')
    A('v_mul_u32_u24 v15, 144, v5')
    A('v_add_u32 v15, %d, v15', T_M)
    M0, R0 = 26, 62
    for rb in range(9):
        A('ds_read_b128 %s, v15 offset:%d', v(M0 + 4 * rb, 4), rb * 16)
        A('ds_read_b128 %s, v15 offset:%d', v(R0 + 4 * rb, 4), T_R - T_M + rb * 16)
    prev = None
    for rb in range(9):
        n_after = 2 * (8 - rb)
        if n_after < 15: A('s_waitcnt lgkmcnt(%d)', n_after)
        re, im = acc(rb, 2), acc(rb, 3)
        for h in (0, 2):
            A(pk('fma', re + h, M0 + 4 * rb + h, 12, re + h, sel='nln', neg=[1, 0, 0]))
            A(pk('fma', im + h, M0 + 4 * rb + h, 12, im + h, sel='nhn', neg=[1, 0, 0]))
        for h in (0, 2):
            A(pk('mul', re + h, re + h, R0 + 4 * rb + h))
            A(pk('mul', im + h, im + h, R0 + 4 * rb + h))
        for r in range(4):
            if prev is not None:
                pr, pi = prev
                A('v_fmac_f32 v%d, v4, v%d', re + r, pi)
                A('v_fmac_f32 v%d, v9, v%d', im + r, pr)
                A('v_fmac_f32 v%d, v8, v%d', re + r, pr)
                A('v_fmac_f32 v%d, v8, v%d', im + r, pi)
            prev = (re + r, im + r)
    A('s_mul_i32 s8, s22, 10240')
    A('s_add_u32 s8, s8, %d', TRB)
    A('v_mov_b32 v16, v%d', prev[0])
    A('v_mov_b32 v17, v%d', prev[1])
    A('v_lshl_add_u32 v15, v14, 5, s8')
    A('v_lshl_add_u32 v20, v5, 3, v15')
    A('ds_write_b64 v20, v[16:17] offset:9216')
    A('s_waitcnt lgkmcnt(0)')
    SQ = 244
    A('ds_read_b128 %s, v15 offset:9216', v(SQ, 4))
    A('ds_read_b128 %s, v15 offset:9232', v(SQ + 4, 4))
    A('v_lshlrev_b32 v21, 3, v3')
    A('s_waitcnt lgkmcnt(0)')
    def cmad(d, x, add):
        A('v_fma_f32 v%d, v18, v%d, v%d', d, x, add)
        A('v_fma_f32 v%d, v18, v%d, v%d', d + 1, x + 1, add + 1)
        A('v_fma_f32 v%d, -v19, v%d, v%d', d, x + 1, d)
        A('v_fmac_f32 v%d, v19, v%d', d + 1, x)
    cmad(22, SQ, SQ + 2)
    cmad(24, 22, SQ + 4)
    cmad(22, 24, SQ + 6)
    A('v_and_b32 v22, -2, v22')
    A('v_and_b32 v23, -2, v23')
    A('s_mov_b64 exec, 0xffff')
    A('buffer_store_dwordx2 v[22:23], v21, s[28:31], s9 offen sc1')
    A('s_mov_b64 exec, -1')
    if stamps: A('s_memtime s[52:53]')
    A.tr(5, 253)
    A('s_lshl_b32 s44, s22, 8')
    A('s_add_u32 s44, s44, %d', T_CS)
    A('v_lshl_add_u32 v13, v5, 4, s44')
    for c in range(2):
        A('ds_read_b128 %s, v13 offset:%d', v(32 + 4 * c, 4), c * 64)
    A('v_lshlrev_b32 v12, 4, v14')
    A('v_add_u32 v12, %d, v12', T_FFN)
    if stamps: A('s_waitcnt lgkmcnt(0)')
    for rb in range(9):
        A('ds_read_b128 %s, v12 offset:%d', v(48 + 4 * rb, 4), rb * 256)
    A('v_lshrrev_b32 v15, 2, v14')
    A('v_mul_u32_u24 v15, 36, v15')
    A('v_and_b32 v16, 3, v14')
    A('s_mul_i32 s44, s18, 144')
    A('v_add3_u32 v15, v15, v16, s44')
    A('s_lshl_b32 s7, s19, 1')
    A('s_add_u32 s7, s7, s17')
    A('s_add_u32 s7, s7, 40')
    A('s_lshl_b32 s7, s7, 12')
    A('s_lshl_b32 s44, s16, 3')
    A('s_add_u32 s7, s7, s44')
    A('v_lshlrev_b32 v16, 8, v5')
    A('s_mov_b32 s10, %d', KS2 * 4096)
    for rb in range(9):
        A('s_waitcnt lgkmcnt(%d)', 8 - rb)
        o = 92 + (rb & 1) * 4
        ffn_block(A, acc(rb, 0), acc(rb, 1), 32, 36, 48 + 4 * rb, 84, o)
        ad = o + 2
        A('v_add_u32 v88, %d, v15', 4 * rb)
        A('v_lshrrev_b32 v89, 6, v88')
        A('v_mul_lo_u32 v89, v89, s10')
        A('v_bfe_u32 v90, v88, 4, 2')
        A('v_lshl_add_u32 v89, v90, 10, v89')
        A('v_and_b32 v90, 15, v88')
        A('v_lshl_add_u32 v89, v90, 4, v89')
        A('v_add_u32 v%d, v89, v16', ad)
        A('buffer_store_dwordx2 %s, v%d, s[36:39], s7 offen', v(o, 2), ad)
    GA = 26
    A('s_mov_b32 s11, 0x%x', SC_OFF)
    A('v_mov_b32 v30, 0x7f000000')
    for i in range(4):
        A('v_add_u32 v31, %d, v5', 4 * i)
        A('v_mul_u32_u24 v%d, 5120, v31', GA + i)
        A('v_add_u32 v%d, v%d, v21', GA + i, GA + i)
        A('v_cmp_gt_u32 vcc, s18, v31')
        A('v_sub_u32 v31, s18, v31')
        A('v_add_u32 v31, -1, v31')
        A('v_cndmask_b32 v%d, v30, v%d, vcc', GA + i, GA + i)
        A('v_max_i32 v31, 0, v31')
        A('v_mul_u32_u24 v31, 144, v31')
        A('v_cvt_f32_u32 v%d, v31', 48 + i)
    def gather():
        for i in range(4):
            A('buffer_load_dwordx2 %s, v%d, s[28:31], s11 offen sc1', v(32 + 2 * i, 2), GA + i)
    gather()
    for i in range(4):
        cpow(40 + 2 * i, n_v=48 + i, t0=52)
    for rb in range(9):
        re, im = acc(rb, 2), acc(rb, 3)
        for h in (0, 2):
            A(pk('mul', 52 + h, im + h, 10, sel='nh'))
            A(pk('mul', im + h, im + h, 10, sel='nl', neg=[1, 0]))
        for h in (0, 2):
            A(pk('fma', im + h, re + h, 10, im + h, sel='nhn', neg=[1, 0, 0]))
            A(pk('fma', re + h, re + h, 10, 52 + h, sel='nln', neg=[0, 0, 1]))
    def cmul(dr, di, ar, ai, br, bi):
        A('v_mul_f32 v%d, v%d, v%d', dr, ar, br)
        A('v_mul_f32 v%d, v%d, v%d', di, ar, bi)
        A('v_fma_f32 v%d, -v%d, v%d, v%d', dr, ai, bi, dr)
        A('v_fmac_f32 v%d, v%d, v%d', di, ai, br)
    tr, ti = acc(0, 0), acc(0, 1)
    cmul(tr, ti, 10, 11, 8, 9)
    cmul(56, 57, 8, 9, 8, 9)
    cmul(tr + 1, ti + 1, tr, ti, 8, 9)
    cmul(58, 59, 56, 57, 56, 57)
    A(pk('mul', tr + 2, tr, 56, sel='nl'))
    A(pk('mul', ti + 2, tr, 56, sel='nh'))
    A(pk('fma', tr + 2, ti, 56, tr + 2, sel='nhn', neg=[1, 0, 0]))
    A(pk('fma', ti + 2, ti, 56, ti + 2, sel='nln'))
    for rb in range(1, 9):
        pr_, pi_ = acc(rb - 1, 0), acc(rb - 1, 1)
        nr, ni = acc(rb, 0), acc(rb, 1)
        for h in (0, 2):
            A(pk('mul', nr + h, pr_ + h, 58, sel='nl'))
            A(pk('mul', ni + h, pr_ + h, 58, sel='nh'))
        for h in (0, 2):
            A(pk('fma', nr + h, pi_ + h, 58, nr + h, sel='nhn', neg=[1, 0, 0]))
            A(pk('fma', ni + h, pi_ + h, 58, ni + h, sel='nln'))
    lp = A.newlabel(N + '_gp'); lo = A.newlabel(N + '_go')
    A('s_mov_b32 s5, 0')
    A.label(lp)
    A('s_waitcnt vmcnt(0)')
    A('v_max3_u32 v52, v32, v33, v34')
    A('v_max3_u32 v53, v35, v36, v37')
    A('v_max3_u32 v52, v52, v38, v39')
    A('v_max_u32 v52, v52, v53')
    A('v_cmp_eq_u32 vcc, -1, v52')
    A('s_add_u32 s5, s5, 1')
    A('s_nop 3')
    A('s_cbranch_vccz %s', lo)
    A('s_cmp_ge_u32 s5, 0x40000')
    A('s_cbranch_scc1 %s', lo)
    gather()
    A('s_branch %s', lp)
    A.label(lo)
    if stamps: A('s_memtime s[54:55]')
    A.tr(6, 253)
    cmul(52, 53, 40, 41, 32, 33)
    for i in range(1, 4):
        w, x = 40 + 2 * i, 32 + 2 * i
        A('v_fmac_f32 v52, v%d, v%d', w, x)
        A('v_fmac_f32 v53, v%d, v%d', w, x + 1)
        A('v_fma_f32 v52, -v%d, v%d, v52', w + 1, x + 1)
        A('v_fmac_f32 v53, v%d, v%d', w + 1, x)
    for step in (32, 16):
        A('v_mov_b32 v54, v52')
        A('v_mov_b32 v55, v53')
        A('s_nop 1')
        A('v_permlane%d_swap_b32 v52, v54', step)
        A('v_permlane%d_swap_b32 v53, v55', step)
        A('s_nop 1')
        A('v_add_f32 v52, v52, v54')
        A('v_add_f32 v53, v53, v55')
    for qq in range(3):
        cmad(54, 52, SQ + 2 * qq)
        A('v_cmp_lt_u32 vcc, %d, v5', qq)
        A('s_nop 1')
        A('v_cndmask_b32 v52, v52, v54, vcc')
        A('v_cndmask_b32 v53, v53, v55, vcc')
    A('v_mul_u32_u24 v15, 288, v14')
    A('v_mul_u32_u24 v16, 72, v5')
    A('v_add3_u32 v15, v15, v16, s8')
    for rb in range(9):
        re, im = acc(rb, 2), acc(rb, 3)
        tr, ti = acc(rb, 0), acc(rb, 1)
        for h in (0, 2):
            A(pk('fma', re + h, tr + h, 52, re + h, sel='nln'))
            A(pk('fma', im + h, tr + h, 52, im + h, sel='nhn', neg=[1, 0, 0]))
        for h in (0, 2):
            A(pk('fma', re + h, ti + h, 52, re + h, sel='nhn', neg=[1, 0, 0]))
            A(pk('fma', im + h, ti + h, 52, im + h, sel='nln', neg=[1, 0, 0]))
        A('v_cvt_pk_bf16_f32 v%d, v%d, v%d', tr, re, re + 1)
        A('v_cvt_pk_bf16_f32 v%d, v%d, v%d', tr + 1, re + 2, re + 3)
        A('v_cvt_pk_bf16_f32 v%d, v%d, v%d', tr + 2, im, im + 1)
        A('v_cvt_pk_bf16_f32 v%d, v%d, v%d', tr + 3, im + 2, im + 3)
        A('ds_write_b64 v15, %s offset:%d', v(tr, 2), 8 * rb)
        A('ds_write_b64 v15, %s offset:%d', v(tr + 2, 2), 16 * 288 + 8 * rb)
    A('v_lshrrev_b32 v16, 2, v14')
    A('v_lshl_add_u32 v16, v5, 3, v16')
    A('v_mul_u32_u24 v16, 288, v16')
    A('v_and_b32 v17, 3, v14')
    A('v_lshl_add_u32 v16, v17, 3, v16')
    A('v_add_u32 v16, s8, v16')
    A('v_lshlrev_b32 v17, 4, v2')
    A('s_mul_i32 s6, s18, 9')
    A('s_lshl_b32 s7, s19, 2')
    A('s_add_u32 s7, s7, s22')
    A('s_waitcnt lgkmcnt(0)')
    for tb in range(9):
        for hf in range(2):
            A('ds_read_b64_tr_b16 %s, v16 offset:%d', v(56 + 4 * tb + 2 * hf, 2), 4 * 288 * hf + 32 * tb)
    for tb in range(9):
        g_soff(A, 's46', tb, 's7')
        n_after = 2 * (8 - tb)
        if n_after < 15: A('s_waitcnt lgkmcnt(%d)', n_after)
        A('buffer_store_dwordx4 %s, v17, s[36:39], s46 offen', v(56 + 4 * tb, 4))

for gw in range(1024): assert (gw * 3277) >> 16 == gw // 20
for l in range(256): assert (l * 1093) >> 16 == l // 60
for l in range(76): assert (l * 13108) >> 16 == l // 5
for d in range(52): assert d >= 40 or (d * 52) >> 8 == d // 5
```

```python
import sys
from asmlib import *
from layout import *
import gen_k1, gen_k2
def header():
    ref = open('parallel_sum__ssm_conv_s5__geglu_ffn__prompt.s.ref').read().split('\n')
    out = []
    for l in ref:
        if l.startswith('; Override'): break
        out.append(l)
    return out
def report(A, base, op, sel):
    kernel_begin(A, 'rep_kernel')
    A('s_cmp_ge_u32 s2, 4')
    A('s_cbranch_scc1 rep_end')
    A('s_load_dwordx4 s[4:7], s[0:1], 112')
    A('s_lshl_b32 s3, s2, 8')
    A('v_add_u32 v1, s3, v0')
    A('s_waitcnt lgkmcnt(0)')
    srd(A, 8, 6, base + 1020 * 256)
    srd(A, 12, 4, 256)
    A('v_lshlrev_b32 v2, 8, v1')
    A('s_mov_b32 s16, 0x%x', base)
    for i in range(4):
        A('buffer_load_dwordx4 v[%d:%d], v2, s[8:11], s16 offen offset:%d', 4 + 4 * i, 7 + 4 * i, 16 * i)
    A('v_lshrrev_b32 v3, 2, v1')
    A('v_cmp_gt_u32 s[20:21], 120, v3') if False else None
    A('s_mov_b32 s17, 120')
    A('v_cmp_gt_u32 s[20:21], s17, v3')
    A('s_mov_b32 s17, 180')
    A('v_cmp_gt_u32 s[22:23], s17, v3')
    A('v_and_b32 v20, 2, v3')
    A('v_cmp_eq_u32 s[24:25], 0, v20')
    A('s_nop 3')
    A('s_and_b64 s[22:23], s[22:23], s[24:25]')
    A('s_or_b64 s[20:21], s[20:21], s[22:23]')
    A('s_mov_b32 s17, 1020')
    A('v_cmp_gt_u32 vcc, s17, v1')
    A('s_nop 3')
    if sel == 'Q': A('s_and_b64 vcc, vcc, s[20:21]')
    if sel == 'P': A('s_andn2_b64 vcc, vcc, s[20:21]')
    A('v_mov_b32 v21, 0')
    A('v_mov_b32 v22, 1')
    A('s_waitcnt vmcnt(0)')
    for k in range(1, 16):
        A('v_sub_u32 v%d, v%d, v4', 4 + k, 4 + k)
        A('v_max_i32 v%d, 0, v%d', 4 + k, 4 + k)
    A('s_and_saveexec_b64 s[26:27], vcc')
    A('s_cbranch_execz rep_end')
    A('buffer_atomic_add v22, v21, s[12:15], 0 offen sc1')
    for k in range(1, 16):
        A('buffer_atomic_%s v%d, v21, s[12:15], 0 offen offset:%d sc1', op, 4 + k, 4 * k)
    A.label('rep_end')
    A('s_endpgm')
def build(out, stamps=False, k2exp='X', depth=4, rep=None):
    A = Asm()
    A.lines += header()
    A.lines.append('; @launch kernel=k1_kernel grid=(256,1,1) block=(512,1,1) lds=%d' % gen_k1.LDS_K1)
    A.lines.append('; @launch kernel=k2_kernel grid=(256,1,1) block=(256,1,1) lds=81920')
    if rep: A.lines.append('; @launch kernel=rep_kernel grid=(4,1,1) block=(256,1,1) lds=0')
    A('.amdgcn_target "amdgcn-amd-amdhsa--gfx950"')
    r1 = gen_k1.gen_k1(A, stamps=stamps, trace=bool(rep))
    r2 = gen_k2.gen_k2(A, DEPTH=depth, stamps=False, exp=k2exp)
    if rep:
        report(A, DBG_OFF + (0x40000 if rep[0] == 'c' else 0), 'add' if rep[1] == 'a' else 'umax', rep[2])
        kernel_desc(A, 'rep_kernel', 24, 32, 24)
    kernel_desc(A, 'k1_kernel', r1['vgpr'], r1['sgpr'], r1['accum'])
    kernel_desc(A, 'k2_kernel', r2['vgpr'], r2['sgpr'], r2['accum'])
    open(out, 'w').write(A.text())
if __name__ == '__main__':
    o = sys.argv[2] if len(sys.argv) > 2 else ''
    build(sys.argv[1], stamps=(o == 'S'), rep=o[1:] if o.startswith('R') else None)
```

```python
import sys
from asmlib import *
from layout import *
import gen_k1, gen_k2
T0K = """
.text
.globl t0_kernel
.p2align 8
.type t0_kernel,@function
t0_kernel:
    s_cmp_ge_u32 s2, 1
    s_cbranch_scc1 t0_end
    s_load_dwordx2 s[4:5], s[0:1], 120
    s_memrealtime s[8:9]
    s_waitcnt lgkmcnt(0)
    s_mov_b32 s12, s4
    s_mov_b32 s13, s5
    s_mov_b32 s14, 0x1000000
    s_mov_b32 s15, 0x20000
    v_mov_b32 v1, 0xe90000
    buffer_load_dword v5, v1, s[12:15], 0 offen
    v_mov_b32 v4, s8
    s_waitcnt vmcnt(0)
    buffer_store_dwordx2 v[4:5], v1, s[12:15], 0 offen
t0_end:
    s_endpgm
.section .rodata,"a"
.p2align 6
.amdhsa_kernel t0_kernel
  .amdhsa_next_free_vgpr 8
  .amdhsa_next_free_sgpr 24
  .amdhsa_accum_offset 8
  .amdhsa_group_segment_fixed_size 0
  .amdhsa_kernarg_size 128
  .amdhsa_user_sgpr_count 2
  .amdhsa_user_sgpr_kernarg_segment_ptr 1
  .amdhsa_system_sgpr_workgroup_id_x 1
.end_amdhsa_kernel
"""
def header():
    ref = open('parallel_sum__ssm_conv_s5__geglu_ffn__prompt.s.ref').read().split('\n')
    out = []
    for l in ref:
        if l.startswith('; Override'): break
        out.append(l)
    return out
def report(A, base, op, sel):
    kernel_begin(A, 'rep_kernel')
    A('s_cmp_ge_u32 s2, 4')
    A('s_cbranch_scc1 rep_end')
    A('s_load_dwordx4 s[4:7], s[0:1], 112')
    A('s_memrealtime s[28:29]')
    A('s_lshl_b32 s3, s2, 8')
    A('v_add_u32 v1, s3, v0')
    A('s_waitcnt lgkmcnt(0)')
    srd(A, 8, 6, base + 1020 * 256)
    srd(A, 12, 4, 256)
    A('v_lshlrev_b32 v2, 8, v1')
    A('s_mov_b32 s16, 0x%x', base)
    for i in range(4):
        A('buffer_load_dwordx4 v[%d:%d], v2, s[8:11], s16 offen offset:%d', 4 + 4 * i, 7 + 4 * i, 16 * i)
    A('v_mov_b32 v25, 0xe90000')
    A('buffer_load_dword v24, v25, s[8:11], 0 offen')
    A('buffer_load_dword v23, v25, s[8:11], 0 offen offset:4')
    A('v_lshrrev_b32 v3, 2, v1')
    A('v_cmp_gt_u32 s[20:21], 120, v3') if False else None
    A('s_mov_b32 s17, 120')
    A('v_cmp_gt_u32 s[20:21], s17, v3')
    A('s_mov_b32 s17, 180')
    A('v_cmp_gt_u32 s[22:23], s17, v3')
    A('v_and_b32 v20, 2, v3')
    A('v_cmp_eq_u32 s[24:25], 0, v20')
    A('s_nop 3')
    A('s_and_b64 s[22:23], s[22:23], s[24:25]')
    A('s_or_b64 s[20:21], s[20:21], s[22:23]')
    A('s_mov_b32 s17, 1020')
    A('v_cmp_gt_u32 vcc, s17, v1')
    A('s_nop 3')
    if sel == 'Q': A('s_and_b64 vcc, vcc, s[20:21]')
    if sel == 'P': A('s_andn2_b64 vcc, vcc, s[20:21]')
    A('v_mov_b32 v21, 0')
    A('v_mov_b32 v22, 1')
    A('s_waitcnt vmcnt(0)')
    for k in range(1, 10):
        A('v_sub_u32 v%d, v%d, v4', 4 + k, 4 + k)
        A('v_max_i32 v%d, 0, v%d', 4 + k, 4 + k)
    if base != DBG_OFF:
        A('v_sub_u32 v15, v18, v23')
        A('v_sub_u32 v14, 0x100000, v15')
        A('v_sub_u32 v16, v19, v23')
        A('v_sub_u32 v17, 0x100000, v16')
        A('v_sub_u32 v18, s28, v23')
        A('v_sub_u32 v19, v24, v23')
    else:
      for k in range(10, 16):
        A('v_sub_u32 v%d, v%d, v4', 4 + k, 4 + k)
        A('v_max_i32 v%d, 0, v%d', 4 + k, 4 + k)
    A('s_and_saveexec_b64 s[26:27], vcc')
    A('s_cbranch_execz rep_end')
    A('buffer_atomic_add v22, v21, s[12:15], 0 offen sc1')
    for k in range(1, 16):
        A('buffer_atomic_%s v%d, v21, s[12:15], 0 offen offset:%d sc1', op, 4 + k, 4 * k)
    A.label('rep_end')
    A('s_endpgm')
def build(out, stamps=False, k2exp='X', depth=4, rep=None):
    A = Asm()
    A.lines += header()
    T = '; @launch kernel=t0_kernel grid=(1,1,1) block=(64,1,1) lds=0'
    if rep: A.lines.append(T)
    A.lines.append('; @launch kernel=k1_kernel grid=(256,1,1) block=(512,1,1) lds=%d' % gen_k1.LDS_K1)
    if rep: A.lines.append(T)
    A.lines.append('; @launch kernel=k2_kernel grid=(256,1,1) block=(256,1,1) lds=81920')
    if rep: A.lines.append('; @launch kernel=rep_kernel grid=(4,1,1) block=(256,1,1) lds=0')
    A('.amdgcn_target "amdgcn-amd-amdhsa--gfx950"')
    r1 = gen_k1.gen_k1(A, stamps=stamps, trace=bool(rep))
    r2 = gen_k2.gen_k2(A, DEPTH=depth, stamps=False, exp=k2exp)
    if rep:
        report(A, DBG_OFF + (0x40000 if rep[0] == 'c' else 0), 'add' if rep[1] == 'a' else 'umax', rep[2])
        kernel_desc(A, 'rep_kernel', 28, 32, 28)
        A.lines.append(T0K)
    kernel_desc(A, 'k1_kernel', r1['vgpr'], r1['sgpr'], r1['accum'])
    kernel_desc(A, 'k2_kernel', r2['vgpr'], r2['sgpr'], r2['accum'])
    open(out, 'w').write(A.text())
if __name__ == '__main__':
    o = sys.argv[2] if len(sys.argv) > 2 else ''
    build(sys.argv[1], stamps=(o == 'S'), rep=o[1:] if o.startswith('R') else None)
```

```python
L, D, P, F = 2048, 640, 640, 1536
KS2 = 88
G_OFF = 0
G_BYTES = 32 * KS2 * 4096
W2_OFF = G_BYTES
W2_BYTES = 8 * KS2 * 5120
RP_OFF = 0xE70000
CP_OFF = 0xED0000
SC_OFF = 0xF30000
FW_OFF = 0x1000000
FG_OFF = 0x1020000
ST_OFF = 0xF64000
WS_USED = 24 << 20
DBG_OFF = 18 << 20
assert W2_OFF + W2_BYTES == RP_OFF

def k2_kmap():
    import numpy as np
    km = np.zeros((KS2, 4, 8), dtype=np.int64)
    for ks in range(40):
        for kq in range(4):
            for j in range(8):
                km[ks, kq, j] = (0 if kq < 2 else 640) + 16 * ks + 8 * (kq & 1) + j
    for ks in range(40, KS2):
        for kq in range(4):
            for j in range(8):
                if ks < 60: km[ks, kq, j] = 1280 + 32 * (ks - 40) + 8 * kq + j
                else: km[ks, kq, j] = 1280 + 32 * (ks - 40) + 16 * (j >> 2) + 4 * kq + (j & 3)
    return km

def pack_G(Gm):
    import numpy as np
    km = k2_kmap()
    g = Gm[:, km]
    g = g.reshape(32, 4, 16, KS2, 4, 8)
    g = g.transpose(0, 3, 1, 4, 2, 5)
    return np.ascontiguousarray(g).reshape(-1)

def unpack_G(flat):
    import numpy as np
    km = k2_kmap()
    g = flat.reshape(32, KS2, 4, 4, 16, 8).transpose(0, 2, 4, 1, 3, 5).reshape(2048, KS2, 4, 8)
    out = np.zeros((2048, 2816), dtype=flat.dtype)
    out[:, km] = g
    return out

def pack_W2(W2t):
    import numpy as np
    km = k2_kmap()
    w = W2t[:, km]
    w = w.reshape(8, 5, 16, KS2, 4, 8).transpose(0, 3, 1, 4, 2, 5)
    return np.ascontiguousarray(w).reshape(-1)
```

```python
import sys, struct, os
from asmlib import *
from layout import *

STAGE = 51200
NSTG = 10
XL = 3 * STAGE
T_FFN = XL
T_M = XL + 2304
T_R = XL + 2880
T_CS = XL + 3456
T_P2 = XL + 4480
T_TAG = XL + 4992
LDS_F = XL + 5008
TRB = 0
W2L = STAGE
OOB = 0x7f000000
SPIN = 0x20000
def f2u(x): return struct.unpack('<I', struct.pack('<f', x))[0]
C1 = -2.0 * 0.7978845608028654 * 1.4426950408889634
C2 = C1 * 0.044715
PX, PLRE, PLIM, PBRE, PBIM, PCRE, PCIM, PLDT, PDSK, PBX, PWG, PWU, PWD, POUT, PDBG, PWS = [64 + 2 * i for i in range(16)]
ACC = 100
def acc(rb, c, r=0): return ACC + (rb * 4 + c) * 4 + r

def pk(op, d, a_, b_, c_=None, sel=None, neg=None):
    srcs = [a_, b_] + ([c_] if c_ is not None else [])
    n = len(srcs)
    sel = sel or 'n' * n
    lo = [1 if x == 'h' else 0 for x in sel]
    hi = [0 if x == 'l' else 1 for x in sel]
    t = 'v_pk_%s_f32 %s, %s' % (op, v(d, 2), ', '.join(v(x, 2) for x in srcs))
    t += ' op_sel:[%s] op_sel_hi:[%s]' % (','.join(map(str, lo)), ','.join(map(str, hi)))
    if neg and any(neg):
        t += ' neg_lo:[%s] neg_hi:[%s]' % (','.join(map(str, neg)), ','.join(map(str, neg)))
    return t

class Gen:
    def __init__(self, A, name, fused=True, trace=False):
        self.A, self.N, self.fused, self.trace = A, name, fused, trace
        self.SC1 = ' sc1' if fused else ''

    def tr(self, k):
        if not self.trace: return
        A = self.A
        A('s_memtime s[96:97]')
        A('s_waitcnt lgkmcnt(0)')
        if isinstance(k, tuple):
            A('s_add_u32 m0, %s, %d', k[0], k[1])
            A('v_writelane_b32 v253, s96, m0')
        else:
            A('v_writelane_b32 v253, s96, %d', k)
    def tr_store(self, base):
        if not self.trace: return
        A = self.A
        A('s_memrealtime s[96:97]')
        A('s_waitcnt lgkmcnt(0)')
        A('v_writelane_b32 v253, s96, 31')
        A('v_writelane_b32 v253, s100, 30')
        A('v_writelane_b32 v253, s48, 0')
        A('s_lshl_b32 s44, s2, 2')
        A('s_add_u32 s44, s44, s22')
        A('s_lshl_b32 s44, s44, 8')
        A('s_add_u32 s44, s44, 0x%x', base)
        A('v_lshlrev_b32 v1, 2, v2')
        A('buffer_store_dword v253, v1, s[28:31], s44 offen')

    def spin(self, check, reload, tagname, sleep=2):
        A, N = self.A, self.N
        lp = A.newlabel(N + '_' + tagname); lo = A.newlabel(N + '_' + tagname + 'o')
        A('s_mov_b32 s5, 0')
        A.label(lp)
        check()
        A('s_add_u32 s5, s5, 1')
        A('s_nop 3')
        A('s_cbranch_vccz %s', lo)
        A('s_cmp_ge_u32 s5, 0x%x', SPIN)
        A('s_cbranch_scc1 %s', lo)
        A('s_sleep %d', sleep)
        reload()
        A('s_waitcnt vmcnt(0)')
        A('s_branch %s', lp)
        A.label(lo)

    def frag_addrs(self):
        A = self.A
        A('v_and_b32 v12, 15, v2')
        A('v_bfe_u32 v13, v2, 1, 3')
        A('v_xor_b32 v13, v5, v13')
        A('v_lshlrev_b32 v13, 4, v13')
        A('v_lshl_add_u32 v20, v12, 7, v13')
        A('v_xor_b32 v21, 64, v20')
        A('v_lshrrev_b32 v13, 2, v12')
        A('v_lshl_add_u32 v13, v5, 3, v13')
        A('v_lshlrev_b32 v13, 7, v13')
        A('v_and_b32 v14, 3, v2')
        A('v_lshl_add_u32 v13, v14, 3, v13')
        A('v_bfe_u32 v14, v2, 3, 2')
        A('s_lshl_b32 s44, s16, 1')
        A('s_lshl_b32 s45, s17, 14')
        A('s_cmp_eq_u32 s20, 1')
        A('s_cselect_b32 s44, s22, s44')
        A('s_cselect_b32 s45, 0, s45')
        A('s_add_u32 s45, s45, 18432')
        A('v_xor_b32 v15, s44, v14')
        A('v_lshl_add_u32 v22, v15, 5, v13')
        A('v_add_u32 v22, s45, v22')
        A('v_xor_b32 v23, 32, v22')
        A('s_lshl_b32 s44, s22, 11')
        A('s_add_u32 s44, s44, %d', 18432 + 16384)
        A('v_add_u32 v24, s44, v20')
        A('v_add_u32 v25, s44, v21')

    def row_gather(self, d0, vaddr):
        A = self.A
        for i in range(10):
            A('s_mov_b32 s44, 0x%x', RP_OFF + i * 2304)
            A('buffer_load_dwordx4 %s, v%d, s[28:31], s44 offen sc1', v(d0 + 4 * i, 4), vaddr)
    def tagcheck(self, dst, regs, first=True):
        A = self.A
        for i, r in enumerate(regs):
            if first and i == 0: A('v_xor_b32 v%d, s4, v%d', dst, r)
            else: A('v_bitop3_b32 v%d, v%d, s4, v%d bitop3:0xf6', dst, dst, r)
    def row_math(self, d0, t):
        A = self.A
        for i in range(1, 10):
            A('v_add_f32 v%d, v%d, v%d', d0, d0, d0 + 4 * i)
            A('v_add_f32 v%d, v%d, v%d', d0 + 2, d0 + 2, d0 + 4 * i + 2)
        A('v_mul_f32 v%d, 0x%x, v%d', t, f2u(1.0 / 640), d0)
        A('v_mul_f32 v%d, 0x%x, v%d', t + 1, f2u(1.0 / 640), d0 + 2)
        A('v_fma_f32 v%d, -v%d, v%d, v%d', t + 1, t, t, t + 1)
        A('v_max_f32 v%d, 0, v%d', t + 1, t + 1)
        A('v_cvt_pk_bf16_f32 v%d, v%d, v%d', t + 2, t, t + 1)
        A('v_lshlrev_b32 v%d, 16, v%d', t + 4, t + 2)
        A('v_and_b32 v%d, 0xffff0000, v%d', t + 1, t + 2)
        A('v_add_f32 v%d, 0x%x, v%d', t + 1, f2u(1e-5), t + 1)
        A('v_cvt_pk_bf16_f32 v%d, v%d, v%d', t + 2, t + 1, t + 1)
        A('v_lshlrev_b32 v%d, 16, v%d', t + 1, t + 2)
        A('v_sqrt_f32 v%d, v%d', t + 1, t + 1)
        A('s_nop 0')
        A('v_cvt_pk_bf16_f32 v%d, v%d, v%d', t + 2, t + 1, t + 1)
        A('v_lshlrev_b32 v%d, 16, v%d', t + 1, t + 2)
        A('v_rcp_f32 v%d, v%d', t + 5, t + 1)
        A('s_nop 0')

    def gen(self):
        A, N = self.A, self.N
        kernel_begin(A, N)
        A('s_cmp_ge_u32 s2, 256')
        A('s_cbranch_scc1 %s_end', N)
        A('s_load_dwordx16 s[64:79], s[0:1], 0')
        A('s_load_dwordx16 s[80:95], s[0:1], 64')
        if self.trace:
            A('s_memtime s[48:49]')
            A('s_memrealtime s[100:101]')
            A('v_mov_b32 v253, 0')
        A('v_lshrrev_b32 v1, 6, v0')
        A('v_and_b32 v2, 63, v0')
        A('v_readfirstlane_b32 s21, v1')
        A('s_and_b32 s3, s2, 7')
        A('s_lshl_b32 s3, s3, 5')
        A('s_lshr_b32 s16, s2, 3')
        A('s_add_u32 s3, s3, s16')
        A('s_sub_u32 s3, s3, 1')
        A('s_max_i32 s44, s3, 0')
        A('s_mul_i32 s16, s44, 1093')
        A('s_lshr_b32 s16, s16, 16')
        A('s_mul_i32 s17, s16, 60')
        A('s_sub_u32 s17, s44, s17')
        A('s_lshr_b32 s18, s17, 2')
        A('s_and_b32 s19, s17, 3')
        A('s_lshl_b32 s16, s16, 2')
        A('s_add_u32 s19, s19, s16')
        A('s_sub_u32 s17, s44, 180')
        A('s_mul_i32 s16, s17, 13108')
        A('s_lshr_b32 s16, s16, 16')
        A('s_mul_i32 s20, s16, 5')
        A('s_sub_u32 s20, s17, s20')
        A('s_add_u32 s20, s20, 12')
        A('s_cmp_ge_u32 s44, 180')
        A('s_cselect_b32 s18, s16, s18')
        A('s_cselect_b32 s19, s20, s19')
        A('s_cmp_lt_u32 s19, 10')
        A('s_cselect_b32 s20, 1, 0')
        A('s_and_b32 s22, s21, 3')
        A('s_and_b32 s16, s22, 1')
        A('s_lshr_b32 s17, s22, 1')
        A('v_lshrrev_b32 v5, 4, v2')
        A('s_add_u32 s51, s18, s19')
        A('s_mul_i32 s44, s51, 52')
        A('s_lshr_b32 s44, s44, 8')
        A('s_mul_i32 s45, s44, 5')
        A('s_sub_u32 s51, s51, s45')
        A('s_and_b32 s44, s44, 1')
        A('s_mul_i32 s23, s44, 5')
        A('s_cmp_lt_u32 s21, 4')
        A('s_cbranch_scc1 %s_comp', N)
        self.helper()
        self.compute()
        A.label('%s_end' % N)
        A('s_endpgm')
        return dict(vgpr=256, sgpr=102, accum=256, lds=LDS_F)

    def dma_groups(self):
        A, N = self.A, self.N
        G = []
        for n in range(5):
            g = []
            if n == 0: g += ['s_add_u32 m0, s60, s61', 's_mov_b32 s63, s58']
            else: g += ['s_add_u32 m0, m0, 4096', 's_add_u32 s63, s63, s55']
            if n == 4:
                lb = A.newlabel(N + '_skA')
                g += ['s_cmp_ge_u32 s22, 2', 's_cbranch_scc1 %s' % lb, 'buffer_load_dwordx4 v18, s[24:27], s63 offen lds', lb + ':']
            else:
                g += ['buffer_load_dwordx4 v18, s[24:27], s63 offen lds']
            G.append(g)
        for i in range(8):
            g = []
            if i == 0: g += ['s_add_u32 m0, s60, s62', 's_mov_b32 s63, s59']
            elif i == 4: g += ['s_add_u32 m0, m0, 4096', 's_add_u32 s63, s63, s56', 's_add_u32 s63, s63, 4096']
            else: g += ['s_add_u32 s63, s63, s56']
            g += ['buffer_load_dwordx4 %s, s[32:35], s63 offen offset:%d lds' % ('v10' if i % 2 == 0 else 'v11', (i % 4) * 1024)]
            G.append(g)
        G[-1] += ['s_add_u32 s58, s58, 128', 's_cmp_eq_u32 s58, 1280', 's_cselect_b32 s58, 0, s58', 's_cselect_b32 s63, s50, s57',
                  's_add_u32 s59, s59, s63', 's_add_u32 s60, s60, %d' % STAGE,
                  's_cmp_eq_u32 s60, %d' % (3 * STAGE), 's_cselect_b32 s60, 0, s60']
        return G
    def weave(self, groups, lines, per=None):
        A = self.A
        lines = [l.strip() for l in lines]
        per = per or -(-len(lines) // len(groups))
        uses_scc = lambda l: l.startswith(('s_cselect', 's_cbranch_scc', 's_addc'))
        def scc_live_at(k):
            for l in lines[k:]:
                if uses_scc(l): return True
                if l.startswith('s_') and not l.startswith(('s_mov', 's_mul_i32', 's_nop', 's_waitcnt')): return False
            return False
        k = 0
        for g in groups:
            for l in g: A(l)
            e = min(k + per, len(lines))
            while e < len(lines) and scc_live_at(e): e += 1
            for l in lines[k:e]: A(l)
            k = e
        for l in lines[k:]: A(l)
    def dma(self):
        for g in self.dma_groups():
            for l in g: self.A(l)

    def helper(self):
        A, N, tr = self.A, self.N, self.tr
        A('s_setprio 3')
        A('s_cmp_lt_i32 s3, 0')
        A('s_cbranch_scc1 %s_spare', N)
        A('s_and_b32 s54, s20, s17')
        A('v_lshrrev_b32 v3, 3, v2')
        A('v_and_b32 v4, 7, v2')
        A('v_xor_b32 v6, v4, v5')
        A('v_xor_b32 v7, 4, v6')
        A('v_lshrrev_b32 v12, 5, v2')
        A('v_mul_u32_u24 v12, 36, v12')
        A('v_and_b32 v13, 3, v3')
        A('v_add_u32 v12, v12, v13')
        A('s_mul_i32 s44, s16, 72')
        A('s_lshl_b32 s45, s17, 2')
        A('s_add_u32 s44, s44, s45')
        A('s_lshl_b32 s45, s22, 3')
        A('s_cmp_eq_u32 s20, 1')
        A('s_cselect_b32 s44, s44, s45')
        A('s_cselect_b64 vcc, -1, 0')
        A('s_mov_b32 s45, 40960')
        A('s_cselect_b32 s55, 10240, s45')
        A('s_mul_i32 s45, s18, 144')
        A('s_add_u32 s44, s44, s45')
        A('v_cndmask_b32 v12, v3, v12, vcc')
        A('v_add_u32 v12, s44, v12')
        A('v_mul_u32_u24 v12, 1280, v12')
        A('s_cmp_eq_u32 s16, 1')
        A('s_cselect_b64 vcc, -1, 0')
        A('v_bfe_u32 v8, v2, 4, 1')
        A('v_lshlrev_b32 v8, 1, v8')
        A('v_cndmask_b32 v13, v6, v7, vcc')
        A('v_lshl_add_u32 v18, v13, 4, v12')
        A('v_xor_b32 v8, v4, v8')
        A('v_xor_b32 v9, 4, v8')
        A('v_mul_u32_u24 v12, 1280, v3')
        A('v_mul_u32_u24 v13, 3072, v3')
        A('v_lshl_add_u32 v14, v6, 4, v12')
        A('v_lshl_add_u32 v15, v7, 4, v12')
        A('v_lshl_add_u32 v16, v8, 4, v13')
        A('v_lshl_add_u32 v17, v9, 4, v13')
        A('s_cmp_eq_u32 s54, 1')
        A('s_cselect_b64 vcc, -1, 0')
        A('s_mov_b32 s44, %d', D * F * 2)
        A('s_cselect_b32 s34, %d, s44', P * D * 2)
        A('s_mov_b32 s44, %d', 8 * 3072 - 1024)
        A('s_cselect_b32 s56, %d, s44', 8 * 1280 - 1024)
        A('s_mov_b32 s44, %d', 64 * 3072)
        A('s_cselect_b32 s57, 128, s44')
        A('v_cndmask_b32 v10, v16, v14, vcc')
        A('v_cndmask_b32 v11, v17, v15, vcc')
        A('s_lshl_b32 s44, s19, 1')
        A('s_sub_u32 s44, s44, 10')
        A('s_add_u32 s44, s44, s17')
        A('s_cmp_eq_u32 s20, 1')
        A('s_cselect_b32 s44, s19, s44')
        A('s_lshl_b32 s44, s44, 7')
        A('s_mul_i32 s45, s19, %d', 64 * 1280)
        A('s_cmp_eq_u32 s54, 1')
        A('s_cselect_b32 s59, s45, s44')
        A('s_lshl_b32 s58, s23, 7')
        A('s_mul_i32 s44, s23, s57')
        A('s_add_u32 s59, s59, s44')
        A('s_mul_i32 s50, s57, -9')
        A('s_mov_b32 s60, 0')
        A('s_lshl_b32 s61, s22, 10')
        A('s_lshl_b32 s62, s22, 13')
        A('s_add_u32 s62, s62, 18432')
        A('s_mov_b32 s35, 0x00020000')
        A('s_mov_b32 s26, 0x%x', L * D * 2)
        A('s_mov_b32 s27, 0x00020000')
        A('s_waitcnt lgkmcnt(0)')
        A('s_mov_b32 s24, %s', s(PX))
        A('s_mov_b32 s25, %s', s(PX + 1))
        A('s_cmp_eq_u32 s16, 0')
        A('s_cselect_b64 s[44:45], %s, %s', s(PWG, 2), s(PWU, 2))
        A('s_cselect_b64 s[46:47], %s, %s', s(PBRE, 2), s(PBIM, 2))
        A('s_cmp_eq_u32 s54, 1')
        A('s_cselect_b64 s[32:33], s[46:47], s[44:45]')
        tr(1)
        self.dma()
        mark = len(A.lines)
        self.frag_addrs()
        srd(A, 28, PWS, WS_USED)
        srd(A, 40, PDBG, 256)
        A('s_cmp_ge_u32 s51, 3')
        A('s_cselect_b32 s44, 3, 0')
        A('s_sub_u32 s44, s51, s44')
        A('s_mul_i32 s53, s44, %d', STAGE)
        for i in range(20, 26): A('v_add_u32 v%d, s53, v%d', i, i)
        A('s_lshl_b32 s44, s22, 12')
        A('v_add_u32 v26, s44, v20')
        A('v_add_u32 v27, s44, v21')
        A('v_and_b32 v12, 15, v2')
        A('v_lshrrev_b32 v14, 2, v12')
        A('v_mov_b32 v13, 0x3f803f80')
        for c in range(4):
            A('v_cmp_eq_u32 vcc, %d, v14', c)
            A('s_nop 1')
            for r in range(4):
                A('v_cndmask_b32 v%d, 0, v13, vcc', 28 + 4 * c + r)
        A('v_cmp_eq_u32 s[46:47], v14, v5')
        A('v_mul_u32_u24 v14, 36, v14')
        A('v_and_b32 v15, 3, v12')
        A('v_add_u32 v14, v14, v15')
        A('v_lshlrev_b32 v14, 4, v14')
        A('s_mul_i32 s6, s18, %d', 10 * 2304)
        A('s_mul_i32 s44, s19, 2304')
        A('s_add_u32 s44, s44, s6')
        A('s_add_u32 s44, s44, 0x%x', RP_OFF)
        A('s_cmp_lt_u32 s19, 10')
        A('s_cselect_b32 s44, s44, 0x%x', OOB)
        A('s_lshl_b32 s45, s22, 7')
        A('s_add_u32 s14, s44, s45')
        A('s_add_u32 s15, s44, 512')
        A('s_cmp_eq_u32 s22, 3')
        A('s_cselect_b32 s15, s15, 0x%x', OOB)
        A('v_mov_b32 v15, 0x%x', OOB)
        A('v_add_u32 v16, 8, v14')
        A('v_cndmask_b32 v127, v15, v16, s[46:47]')
        A('v_lshl_add_u32 v16, v5, 6, v14')
        A('v_add_u32 v16, s14, v16')
        A('v_add_u32 v17, s15, v14')
        A('v_cmp_eq_u32 vcc, 2, v5')
        A('s_mul_i32 s7, s19, %d', 10 * 2048)
        A('s_add_u32 s7, s7, 0x%x', CP_OFF)
        A('v_cndmask_b32 v16, v16, v17, vcc')
        A('v_cmp_eq_u32 vcc, 3, v5')
        A('s_lshl_b32 s44, s22, 9')
        A('v_lshl_add_u32 v3, v2, 3, s44')
        A('v_cndmask_b32 v126, v16, v15, vcc')
        A('s_lshl_b32 s44, s18, 11')
        A('s_add_u32 s44, s44, s7')
        A('s_cmp_lt_u32 s18, 10')
        A('s_cselect_b32 s44, s44, 0x%x', OOB)
        A('v_add_u32 v128, s44, v3')
        A('v_mov_b32 v6, 0')
        A('v_mov_b32 v7, %d', T_TAG)
        A('s_mov_b32 s54, 0')
        A('s_add_u32 s52, s51, 1')
        A('s_cmp_eq_u32 s51, 4')
        A('s_cselect_b32 s23, 5, 6')
        self.piece_addr()
        self.p2_setup()
        st = A.lines[mark:]; del A.lines[mark:]
        self.weave(self.dma_groups(), st)
        tr(2)
        A('s_waitcnt vmcnt(12)')
        tr(3)
        A('s_setprio %d', int(os.environ.get('HPRIO', '0')))
        A('s_barrier')
        A('buffer_load_dword v8, v6, s[40:43], 0 offen sc1')
        A.label(N + '_hloop')
        tr(('s54', 32))
        A('s_cmp_eq_u32 s54, s23')
        A('s_cbranch_scc1 %s_wflag', N)
        A.label(N + '_hsel')
        A('s_cmp_eq_u32 s54, s51')
        A('s_cbranch_scc1 %s_sread', N)
        A('s_cmp_eq_u32 s54, s52')
        A('s_cbranch_scc1 %s_smfma', N)
        self.dma()
        A.label(N + '_hwait')
        tr(('s54', 48))
        A('s_cmp_lt_u32 s54, 4')
        A('s_cbranch_scc1 %s_early', N)
        A('s_waitcnt vmcnt(12)')
        if self.fused:
            lw = A.newlabel(N + '_w')
            A('s_cmp_lg_u32 s54, 7')
            A('s_cbranch_scc1 %s', lw)
            self.wflag_load()
            A.label(lw)
        A.label(N + '_hx')
        A('s_cmp_eq_u32 s54, s52')
        A('s_cbranch_scc1 %s_spub', N)
        A.label(N + '_hbar')
        tr(('s54', 40))
        A('s_add_u32 s54, s54, 1')
        A('s_cmp_lt_u32 s54, 8')
        A('s_waitcnt lgkmcnt(0)')
        A('s_barrier')
        A('s_cbranch_scc1 %s_hloop', N)
        A('s_branch %s_h8', N)
        A.label(N + '_early')
        l1 = A.newlabel(N + '_e'); l2 = A.newlabel(N + '_e'); l3 = A.newlabel(N + '_e')
        A('s_cmp_lg_u32 s54, 0')
        A('s_cbranch_scc1 %s', l1)
        A('s_waitcnt vmcnt(12)')
        def chk():
            A('v_cmp_eq_u32 vcc, 0, v8')
        self.spin(chk, lambda: A('buffer_load_dword v8, v6, s[40:43], 0 offen sc1'), 'tg')
        A('v_readfirstlane_b32 s4, v8')
        A('ds_write_b32 v7, v8')
        self.piece_load(0)
        A('s_branch %s_hx', N)
        A.label(l1)
        A('s_cmp_lg_u32 s54, 1')
        A('s_cbranch_scc1 %s', l2)
        A('s_waitcnt vmcnt(22)')
        self.piece_load(1)
        A('s_branch %s_hx', N)
        A.label(l2)
        A('s_waitcnt vmcnt(20)')
        A('s_cmp_eq_u32 s54, 2')
        A('s_cbranch_scc1 %s_hx', N)
        A('s_waitcnt vmcnt(12)')
        self.piece_store()
        A('s_branch %s_hx', N)
        A.label(N + '_wflag')
        A('s_waitcnt vmcnt(0)')
        self.piece_flag()
        A('s_branch %s_hsel', N)
        DA, DB = 64, 88
        def adat(k, ss): return DA + (k * 2 + ss) * 4
        def bdat(c, ss): return DB + (c * 2 + ss) * 4
        A.label(N + '_sread')
        lq = A.newlabel(N + '_hq')
        A('s_cmp_eq_u32 s20, 1')
        A('s_cbranch_scc1 %s', lq)
        R = []
        for m in range(2):
            for p in range(2):
                for ss in range(2):
                    for hf in range(2):
                        R.append('ds_read_b64_tr_b16 %s, v%d offset:%d' % (v(bdat(2 * m + p, ss) + 2 * hf, 2), 22 + p, m * 8192 + (32 * ss + 4 * hf) * 128))
        self.weave(self.dma_groups(), R)
        A('s_branch %s_hwait', N)
        A.label(lq)
        R = []
        for m in range(2):
            for ss in range(2):
                for hf in range(2):
                    R.append('ds_read_b64_tr_b16 %s, v22 offset:%d' % (v(bdat(m, ss) + 2 * hf, 2), m * 8192 + (32 * ss + 4 * hf) * 128))
        for m in range(2):
            for ss in range(2):
                R.append('ds_read_b128 %s, v%d offset:%d' % (v(bdat(2 + m, ss), 4), 24 + ss, m * 8192))
        for k in range(2):
            for ss in range(2):
                R.append('ds_read_b128 %s, v%d offset:%d' % (v(adat(k, ss), 4), 26 + ss, k * 2048))
        for ss in range(2):
            R.append('ds_read_b128 %s, v%d offset:16384' % (v(adat(2, ss), 4), 20 + ss))
        self.weave(self.dma_groups(), R)
        A('s_branch %s_hwait', N)
        A.label(N + '_smfma')
        def mm(d, a_, b_, first):
            return 'v_mfma_f32_16x16x32_bf16 %s, %s, %s, %s' % (v(d, 4), v(a_, 4), v(b_, 4), '0' if first else v(d, 4))
        Mc = [mm(44, 28 + 4 * c, bdat(c, ss), c == 0 and ss == 0) for c in range(4) for ss in range(2)]
        Mr = []
        for k in range(3):
            for ss in range(2):
                Mr.append(mm(48, 28 + 4 * k, adat(k, ss), k == 0 and ss == 0))
                Mr.append(mm(52 + 4 * k, adat(k, ss), adat(k, ss), ss == 0))
        lq = A.newlabel(N + '_mq')
        A('s_cmp_eq_u32 s20, 1')
        A('s_cbranch_scc1 %s', lq)
        self.weave(self.dma_groups(), Mc, per=1)
        A('s_branch %s_hwait', N)
        A.label(lq)
        self.weave(self.dma_groups(), Mr + Mc, per=2)
        A('s_branch %s_hwait', N)
        A.label(N + '_spub')
        A('v_mov_b32 v45, s4')
        A('v_mov_b32 v49, s4')
        A('buffer_store_dwordx2 v[44:45], v128, s[28:31], 0 offen sc1')
        A('s_cmp_eq_u32 s20, 0')
        A('s_cbranch_scc1 %s_hbar', N)
        A('buffer_store_dwordx2 v[48:49], v126, s[28:31], 0 offen sc1')
        for r in range(1, 4):
            A('s_mov_b32 vcc_lo, 0x%x', 0x11111111 << r)
            A('s_mov_b32 vcc_hi, 0x%x', 0x11111111 << r)
            for k in range(3):
                A('v_cndmask_b32 v%d, v%d, v%d, vcc', 52 + 4 * k, 52 + 4 * k, 52 + 4 * k + r)
        for k in range(3):
            A('v_mov_b32 v%d, s4', 53 + 4 * k)
        A('buffer_store_dwordx2 v[52:53], v127, s[28:31], s14 offen sc1')
        A('buffer_store_dwordx2 v[56:57], v127, s[28:31], s14 offen offset:64 sc1')
        A('buffer_store_dwordx2 v[60:61], v127, s[28:31], s15 offen sc1')
        A('s_branch %s_hbar', N)

        A.label(N + '_h8')
        tr(4)
        RG, CG = 24, 64
        def gather():
            self.row_gather(RG, 4)
            for i in range(10):
                A('s_add_u32 s44, s7, %d', i * 2048)
                A('buffer_load_dwordx2 %s, v3, s[28:31], s44 offen sc1', v(CG + 2 * i, 2))
        gather()
        A('s_waitcnt vmcnt(20)')
        nW = 0
        if self.fused:
            self.wflag_check()
            for i in range(2): self.wload(i)
            nW = 10
        A('s_barrier')
        tr(5)
        A('s_waitcnt vmcnt(%d)', nW)
        def chk():
            self.tagcheck(100, [RG + 2 * i + 1 for i in range(20)] + [CG + 2 * i + 1 for i in range(10)])
            A('v_cmp_ne_u32 vcc, 0, v100')
        self.spin(chk, gather, 'sg')
        mark = len(A.lines)
        if self.fused:
            for i in range(2, 5): self.wload(i, sreg='s46')
        vm = A.lines[mark:]; del A.lines[mark:]
        for i in range(1, 10):
            A('v_add_f32 v%d, v%d, v%d', CG, CG, CG + 2 * i)
        A('v_lshrrev_b32 v100, 1, v3')
        A('v_add_u32 v100, %d, v100', T_CS)
        A('ds_write_b32 v100, v%d', CG)
        T = 66
        self.row_math(RG, T)
        A('v_mov_b32 v72, v70')
        A('v_mul_f32 v75, v67, v67')
        A('v_mul_f32 v73, 0x%x, v71', f2u(C1))
        A('v_mul_f32 v74, v71, v71')
        A('v_mul_f32 v74, v74, v71')
        A('v_mul_f32 v74, 0x%x, v74', f2u(C2))
        A('v_subrev_u32 v101, s6, v4')
        A('v_add_u32 v100, %d, v101', T_FFN)
        A('v_lshrrev_b32 v102, 2, v101')
        A('v_add_u32 v102, %d, v102', T_M)
        body = A.lines[mark:]; del A.lines[mark:]
        for k, l in enumerate(body):
            A.lines.append(l)
            nxt_is_nop = k + 1 < len(body) and 's_nop' in body[k + 1]
            if vm and k % 3 == 2 and not nxt_is_nop:
                A.lines.append(vm.pop(0))
                if 's_add' in A.lines[-1]: A.lines.append(vm.pop(0))
        A.lines += vm
        A('s_mov_b32 exec_hi, 0xffff')
        A('ds_write_b128 v100, v[72:75]')
        A('ds_write_b32 v102, v70')
        A('ds_write_b32 v102, v71 offset:%d', T_R - T_M)
        if not self.fused:
            A('s_mul_i32 s44, s18, 1152')
            A('s_add_u32 s44, s44, 0x%x', ST_OFF)
            A('s_cmp_eq_u32 s19, 0')
            A('s_cselect_b32 s44, s44, 0x%x', OOB)
            A('v_lshrrev_b32 v100, 1, v101')
            A('buffer_store_dwordx2 v[70:71], v100, s[28:31], s44 offen')
        A('s_mov_b32 exec_lo, 0')
        A('s_mov_b32 exec_hi, 0xffff0000')
        A('ds_write_b64 v17, v[70:71]')
        A('s_mov_b64 exec, -1')
        A('s_waitcnt lgkmcnt(0)')
        tr(6)
        A('s_barrier')
        if self.fused:
            self.wdma(0, 25)
            A('s_branch %s_p2', N)
        else:
            self.tr_store(DBG_OFF)
            A('s_endpgm')
        A.label(N + '_spare')
        A('s_memrealtime s[44:45]')
        A('s_waitcnt lgkmcnt(0)')
        srd(A, 28, PWS, WS_USED)
        srd(A, 40, PDBG, 256)
        A('v_mov_b32 v6, 0')
        ln = A.newlabel(N + '_nl')
        A('s_cmp_lg_u32 s22, 0')
        A('s_cbranch_scc1 %s', ln)
        A('s_or_b32 s44, s44, 1')
        A('v_mov_b32 v8, s44')
        A('buffer_store_dword v8, v6, s[40:43], 0 offen sc1')
        A.label(ln)
        A('s_setprio 0')
        if self.fused:
            A('v_mov_b32 v8, 0')
            def chk():
                A('v_cmp_eq_u32 vcc, 0, v8')
            self.spin(chk, lambda: A('buffer_load_dword v8, v6, s[40:43], 0 offen sc1'), 'tg')
            A('v_readfirstlane_b32 s4, v8')
        A('s_mov_b32 s6, 0')
        self.piece_addr()
        self.p2_setup()
        self.piece_load(0)
        self.piece_load(1)
        A('s_waitcnt vmcnt(0)')
        self.piece_store()
        if self.fused:
            A('s_waitcnt vmcnt(0)')
            self.piece_flag()
            self.wflag_load()
            A('s_waitcnt vmcnt(0)')
            self.wflag_check()
            for i in range(5): self.wload(i)
            self.wdma(0, 25)
            self.row_gather(24, 4)
            A('s_waitcnt vmcnt(0)')
            def chk():
                self.tagcheck(100, [24 + 2 * i + 1 for i in range(20)])
                A('v_cmp_ne_u32 vcc, 0, v100')
            self.spin(chk, lambda: self.row_gather(24, 4), 'sr')
            self.row_math(24, 66)
            A('s_mov_b32 exec_lo, 0')
            A('s_mov_b32 exec_hi, 0xffff0000')
            A('ds_write_b64 v17, v[70:71]')
            A('s_mov_b64 exec, -1')
            A.label(N + '_p2')
            self.phase2()
        else:
            A('s_endpgm')

    def piece_addr(self):
        A = self.A
        A('s_lshl_b32 s10, s2, 2')
        A('s_add_u32 s10, s10, s22')
        A('s_mul_i32 s8, s10, 3277')
        A('s_lshr_b32 s8, s8, 16')
        A('s_mul_i32 s9, s8, 20')
        A('s_sub_u32 s9, s10, s9')
        A('v_and_b32 v12, 15, v2')
        A('s_cmp_lt_u32 s8, 20')
        A('s_cselect_b32 s44, 8, 4')
        A('s_cselect_b32 s45, 4, 16')
        A('s_mul_i32 s44, s44, 1280')
        A('s_mul_i32 s45, s45, 1280')
        A('v_mul_u32_u24 v13, s44, v5')
        A('v_lshl_add_u32 v162, v12, 1, v13')
        A('s_mul_i32 s66, s8, %d', 32 * 1280)
        A('s_lshl_b32 s47, s9, 6')
        A('s_add_u32 s66, s66, s47')
        A('s_add_u32 s67, s66, s45')
        A('v_mul_u32_u24 v14, 1280, v12')
        A('v_lshl_add_u32 v163, v5, 4, v14')
        A('s_mul_i32 s68, s8, %d', 16 * 1280)
        A('s_add_u32 s68, s68, s47')
        def frag_off(dst, db_s, ks5_s):
            A('s_mul_i32 s44, %s, 52', db_s)
            A('s_lshr_b32 s44, s44, 8')
            A('s_mul_i32 s44, s44, %d', KS2 * 5 - 5)
            A('s_add_u32 s44, s44, %s', db_s)
            A('s_add_u32 s44, s44, %s', ks5_s)
            A('s_lshl_b32 s44, s44, 10')
            A('s_add_u32 %s, s44, 0x%x', dst, W2_OFF)
        A('s_add_u32 s46, s8, 40')
        A('s_mul_i32 s46, s46, 5')
        A('s_lshl_b32 s47, s9, 1')
        frag_off('s11', 's47', 's46')
        A('s_add_u32 s47, s47, 1')
        frag_off('s12', 's47', 's46')
        A('s_cmp_lt_u32 s8, 48')
        A('s_cselect_b32 s11, s11, 0x%x', OOB)
        A('s_cselect_b32 s12, s12, 0x%x', OOB)
        A('s_mul_i32 s46, s9, 10')
        frag_off('s13', 's8', 's46')
        A('s_cmp_lt_u32 s8, 40')
        A('s_cselect_b32 s13, s13, 0x%x', OOB)
        A('v_lshrrev_b32 v15, 1, v5')
        A('v_mul_u32_u24 v15, 4608, v15')
        A('v_lshl_add_u32 v164, v2, 4, v15')
        A('v_lshlrev_b32 v165, 24, v2')
        A('s_lshl_b32 s10, s10, 7')
        A('s_add_u32 s10, s10, 0x%x', FW_OFF)
    def piece_load(self, part):
        A = self.A
        if part == 0:
            srd(A, 36, PCRE, D * P * 2)
            A('buffer_load_dwordx4 v[154:157], v163, s[36:39], s68 offen')
            srd(A, 36, PCIM, D * P * 2)
            A('buffer_load_dwordx4 v[158:161], v163, s[36:39], s68 offen')
        srd(A, 36, PWD, F * D * 2)
        for jj in range(8):
            A('buffer_load_ushort v%d, v162, s[36:39], %s offen offset:%d', 130 + 8 * part + jj, 's66' if jj < 4 else 's67', (jj & 3) * 1280 + 32 * part)
    def piece_store(self):
        A, SC1 = self.A, self.SC1
        A('buffer_store_dwordx4 v[154:157], v164, s[28:31], s13 offen' + SC1)
        A('buffer_store_dwordx4 v[158:161], v164, s[28:31], s13 offen offset:512' + SC1)
        for p in range(2):
            for i in range(4):
                A('v_lshl_or_b32 v%d, v%d, 16, v%d', 146 + 4 * p + i, 131 + 8 * p + 2 * i, 130 + 8 * p + 2 * i)
            A('buffer_store_dwordx4 %s, v9, s[28:31], s%d offen' + SC1, v(146 + 4 * p, 4), 11 + p)
    def piece_flag(self):
        A = self.A
        if not self.fused: return
        A('buffer_store_dword v8, v165, s[28:31], s10 offen sc1')

    WF = 84
    AC, WS0, GB0 = 24, 104, 204
    NW, NG, NS = 5, 3, 22
    def wreg(self, i, nb): return self.WS0 + (i % self.NW) * 20 + nb * 4
    def greg(self, i, mb): return self.GB0 + (i % self.NG) * 16 + mb * 4
    def kstep(self, i):
        return (0, i) if i < 5 else (1, i - 5) if i < 12 else (2, i - 12)
    def wflag_load(self):
        self.A('s_mov_b32 s44, 0x%x', FW_OFF)
        self.A('buffer_load_dword v%d, v16, s[28:31], s44 offen sc1', self.WF)
    def wflag_check(self):
        self.spin(lambda: self.A('v_cmp_ne_u32 vcc, s4, v%d', self.WF), self.wflag_load, 'wf', sleep=8)
    def wload(self, i, sreg='s44'):
        A = self.A
        g, k = self.kstep(i)
        A('s_add_u32 %s, s%d, %d', sreg, 70 + g, k * 5120)
        for nb in range(5):
            if nb < 4: A('buffer_load_dwordx4 %s, v9, s[28:31], %s offen offset:%d sc1', v(self.wreg(i, nb), 4), sreg, nb * 1024)
            else: A('buffer_load_dwordx4 %s, v19, s[28:31], %s offen sc1', v(self.wreg(i, nb), 4), sreg)
    def wdma(self, n0, n1):
        A = self.A
        for n in range(n0, n1):
            if n % 4 == 0:
                A('s_add_u32 m0, s73, %d', n * 1024)
                A('s_add_u32 s44, s72, %d', 5 * 5120 + n * 1024)
            A('buffer_load_dwordx4 v9, s[28:31], s44 offen offset:%d sc1 lds', (n % 4) * 1024)
    def p2_setup(self):
        A = self.A
        A('s_and_b32 s44, s2, 7')
        A('s_lshr_b32 s45, s2, 3')
        A('s_lshr_b32 s46, s44, 1')
        A('s_lshl_b32 s8, s46, 3')
        A('s_lshr_b32 s46, s45, 2')
        A('s_add_u32 s8, s8, s46')
        A('s_and_b32 s46, s44, 1')
        A('s_lshl_b32 s9, s46, 2')
        A('s_and_b32 s46, s45, 3')
        A('s_add_u32 s9, s9, s46')
        A('s_mul_i32 s46, s8, %d', KS2)
        A('s_mul_i32 s47, s9, %d', KS2)
        for g, (mul, add) in enumerate(((5, 40), (7, 60), (10, 0))):
            A('s_mul_i32 s44, s22, %d', mul)
            A('s_add_u32 s44, s44, %d', add)
            A('s_add_u32 s45, s46, s44')
            A('s_lshl_b32 s%d, s45, 12', 84 + g)
            A('s_add_u32 s45, s47, s44')
            A('s_mul_i32 s45, s45, 5120')
            A('s_add_u32 s%d, s45, 0x%x', 70 + g, W2_OFF)
        A('s_mul_i32 s73, s22, 25600')
        A('s_add_u32 s73, s73, %d', W2L)
        A('v_lshlrev_b32 v9, 4, v2')
        A('v_add_u32 v19, 0x1000, v9')
        A('s_lshl_b32 s44, s8, 2')
        A('s_add_u32 s44, s44, s22')
        A('s_mul_i32 s45, s44, 57')
        A('s_lshr_b32 s45, s45, 9')
        A('s_mul_i32 s46, s45, %d', 10 * 2304 - 9 * 256)
        A('s_lshl_b32 s44, s44, 8')
        A('s_add_u32 s46, s46, s44')
        A('s_sub_u32 s46, s46, %d', 48 * 16)
        A('v_add_u32 v12, s46, v9')
        A('v_min_u32 v4, 35, v2')
        A('s_mul_i32 s44, s22, %d', 36 * 16)
        A('s_add_u32 s44, s44, s6')
        A('v_lshl_add_u32 v4, v4, 4, s44')
        A('v_cmp_eq_u32 vcc, 3, v5')
        A('s_lshl_b32 s44, s22, 7')
        A('s_add_u32 s44, s44, %d', T_P2)
        A('v_cndmask_b32 v4, v4, v12, vcc')
        A('v_and_b32 v12, 15, v2')
        A('v_lshl_add_u32 v17, v12, 3, s44')
        A('v_mul_u32_u24 v12, 43, v2')
        A('v_lshrrev_b32 v12, 7, v12')
        A('v_mul_u32_u24 v13, 3, v12')
        A('v_sub_u32 v13, v2, v13')
        A('s_mul_i32 s44, s22, 5')
        A('s_mul_i32 s45, s22, 7')
        A('s_add_u32 s45, s45, 15')
        A('v_add_u32 v14, s44, v12')
        A('v_add_u32 v15, s45, v12')
        A('v_cmp_gt_u32 vcc, 5, v12')
        A('s_mul_i32 s46, s9, 5')
        A('s_lshr_b32 s47, s46, 1')
        A('v_cndmask_b32 v14, v15, v14, vcc')
        A('v_mul_u32_u24 v14, 20, v14')
        A('v_add3_u32 v14, v14, v13, s47')
        A('v_subrev_u32 v12, 36, v2')
        A('v_min_u32 v12, 24, v12')
        A('v_mul_u32_u24 v13, 52, v12')
        A('v_lshrrev_b32 v13, 8, v13')
        A('v_mul_u32_u24 v13, 15, v13')
        A('s_mul_i32 s46, s46, 20')
        A('s_add_u32 s46, s46, s44')
        A('v_add3_u32 v13, v13, v12, s46')
        A('v_cmp_gt_u32 vcc, 36, v2')
        A('s_nop 1')
        A('v_cndmask_b32 v14, v13, v14, vcc')
        A('v_lshlrev_b32 v16, 7, v14')

    def phase2(self):
        A, N, tr = self.A, self.N, self.tr
        AC, NW, NG, NS = self.AC, self.NW, self.NG, self.NS
        wreg, greg = self.wreg, self.greg
        def ac(mb, nb): return AC + (mb * 5 + nb) * 4
        q = []
        def wait(tag):
            idx = [i for i, t in enumerate(q) if t == tag]
            if not idx: return
            n = len(q) - 1 - max(idx)
            A('s_waitcnt vmcnt(%d)', min(n, 63))
            del q[:max(idx) + 1]
        def gload(i):
            g, k = self.kstep(i)
            A('s_add_u32 s45, s%d, %d', 84 + g, k * 4096)
            for mb in range(4):
                A('buffer_load_dwordx4 %s, v%d, s[28:31], s45 offen sc1', v(greg(i, mb), 4), 12 + mb)
                q.append('G%d' % i)
        A('s_setprio 3')
        for mb in range(4):
            A('s_add_u32 s44, s22, %d', mb)
            A('s_and_b32 s44, s44, 3')
            A('s_lshl_b32 s44, s44, 10')
            A('v_add_u32 v%d, s44, v9', 12 + mb)
        A('v_add_u32 v11, s73, v9')
        A('s_lshl_b32 s44, s8, 2')
        A('s_mul_i32 s45, s44, 57')
        A('s_lshr_b32 s52, s45, 9')
        A('s_add_u32 s44, s44, 3')
        A('s_mul_i32 s45, s44, 57')
        A('s_lshr_b32 s53, s45, 9')
        A('s_sub_u32 s53, s53, s52')
        A('s_lshl_b32 s53, s53, 14')
        A('v_and_b32 v3, 15, v2')
        A('v_and_b32 v6, 1, v5')
        A('v_mul_u32_u24 v6, s53, v6')
        A('v_min_u32 v7, 9, v3')
        A('v_lshl_add_u32 v16, v7, 7, v6')
        A('v_min_u32 v7, 6, v3')
        A('v_lshl_add_u32 v18, v7, 7, v6')
        A('s_lshl_b32 s52, s52, 14')
        A('s_add_u32 s52, s52, 0x%x', FG_OFF)
        A('s_mul_i32 s44, s22, 1280')
        A('s_add_u32 s10, s52, s44')
        A('s_add_u32 s12, s10, %d', 68 * 128)
        A('s_mul_i32 s44, s22, 896')
        A('s_add_u32 s11, s52, s44')
        A('s_add_u32 s11, s11, %d', 40 * 128)
        srd(A, 24, PX, L * D * 2)
        srd(A, 32, PDSK, D * 2)
        srd(A, 36, POUT, L * D * 4)
        A('v_and_b32 v3, 15, v2')
        A('s_lshl_b32 s44, s8, 6')
        A('s_lshl_b32 s45, s22, 4')
        A('s_add_u32 s44, s44, s45')
        A('v_add_u32 v3, s44, v3')
        A('s_mul_i32 s45, s9, 80')
        A('v_lshl_add_u32 v6, v5, 2, s45')
        A('v_mul_u32_u24 v7, 640, v3')
        A('v_add_u32 v7, v7, v6')
        A('v_lshlrev_b32 v8, 1, v7')
        A('v_lshlrev_b32 v10, 2, v7')
        A('v_lshlrev_b32 v6, 1, v6')
        def fload(g):
            return lambda: A('buffer_load_dword v22, v%d, s[28:31], s%d offen sc1', 18 if g == 1 else 16, 10 + g)
        fchk = lambda: A('v_cmp_ne_u32 vcc, s4, v22')
        SL = int(os.environ.get('SLEEP', '3'))
        fload(0)()
        tr(7)
        A('s_waitcnt vmcnt(0)')
        tr(8)
        self.spin(fchk, fload(0), 'g0', sleep=SL)
        tr(9)
        A('s_setprio %d', int(os.environ.get('P2PRIO', '1')))
        for i in range(NG): gload(i)
        XR, DR, RS, TM = wreg(17, 0), wreg(17, 0) + 10, wreg(18, 0), wreg(19, 0)
        def unpk(d, s0, s1):
            A('v_lshlrev_b32 v%d, 16, v%d', d, s0)
            A('v_and_b32 v%d, 0xffff0000, v%d', d + 1, s0)
            A('v_lshlrev_b32 v%d, 16, v%d', d + 2, s1)
            A('v_and_b32 v%d, 0xffff0000, v%d', d + 3, s1)
        def residual(nbs):
            t = TM
            def rnd():
                A('v_cvt_pk_bf16_f32 v%d, v%d, v%d', t + 4, t, t + 1)
                A('v_cvt_pk_bf16_f32 v%d, v%d, v%d', t + 5, t + 2, t + 3)
                unpk(t, t + 4, t + 5)
            for nb in nbs:
                o = RS + 4 * nb
                unpk(o, XR + 2 * nb, XR + 2 * nb + 1)
                for h in (0, 2): A(pk('add', t + h, o + h, 20, sel='nl', neg=[0, 1]))
                rnd()
                for h in (0, 2): A(pk('mul', t + h, t + h, 20, sel='nh'))
                rnd()
                unpk(t + 8, DR + 2 * nb, DR + 2 * nb + 1)
                for h in (0, 2): A(pk('mul', t + h, t + h, t + 8 + h))
                rnd()
                for h in (0, 2): A(pk('add', o + h, o + h, t + h))
        for i in range(NS):
            wait('W%d' % i); wait('G%d' % i)
            if i == 17: A('s_waitcnt lgkmcnt(0)')
            for mb in range(4):
                for nb in range(5):
                    A('v_mfma_f32_16x16x32_bf16 %s, %s, %s, %s', v(ac(mb, nb), 4), v(wreg(i, nb), 4), v(greg(i, mb), 4), v(ac(mb, nb), 4) if i else '0')
            nx = i + NW
            if nx < 17:
                self.wload(nx); q.extend(['W%d' % nx] * 5)
            elif nx < NS:
                for nb in range(5):
                    A('ds_read_b128 %s, v11 offset:%d', v(wreg(nx, nb), 4), (nx - 17) * 5120 + nb * 1024)
            if i + NG < NS:
                if i + NG in (5, 12):
                    wait('F')
                    self.spin(fchk, fload(1 if i + NG == 5 else 2), 'g1', sleep=SL)
                    tr(10 if i + NG == 5 else 11)
                gload(i + NG)
            if i + NG + 1 in (5, 12):
                fload(1 if i + NG + 1 == 5 else 2)(); q.append('F')
            if i == 17:
                for nb in range(5):
                    A('buffer_load_dwordx2 %s, v8, s[24:27], 0 offen offset:%d', v(XR + 2 * nb, 2), nb * 32)
                for nb in range(5):
                    A('buffer_load_dwordx2 %s, v6, s[32:35], 0 offen offset:%d', v(DR + 2 * nb, 2), nb * 32)
                q.extend(['X'] * 10)
                A('ds_read_b64 v[20:21], v17')
            if i == 20:
                wait('X')
                A('s_waitcnt lgkmcnt(0)')
                residual(range(0, 3))
        tr(12)
        residual(range(3, 4))
        for mb in range(1, 4):
            for nb in range(5):
                A('ds_write_b128 v11, %s offset:%d', v(ac(mb, nb), 4), ((mb - 1) * 5 + nb) * 1024)
        for mb in range(1, 4):
            A('s_sub_u32 s44, s22, %d', mb)
            A('s_and_b32 s44, s44, 3')
            A('s_mul_i32 s44, s44, 25600')
            A('s_add_u32 s44, s44, %d', W2L + (mb - 1) * 5120)
            A('v_add_u32 v%d, s44, v9', 12 + mb)
        residual(range(4, 5))
        for nb in range(5):
            for h in (0, 2): A(pk('add', ac(0, nb) + h, ac(0, nb) + h, RS + 4 * nb + h))
        A('s_waitcnt lgkmcnt(0)')
        A('s_barrier')
        RD = ac(1, 0)
        for nb in range(5):
            for mb in range(1, 4):
                A('ds_read_b128 %s, v%d offset:%d', v(RD + (nb * 3 + mb - 1) * 4, 4), 12 + mb, nb * 1024)
        for nb in range(5):
            A('s_waitcnt lgkmcnt(%d)', 3 * (4 - nb))
            o = ac(0, nb); r = RD + nb * 12
            for h in (0, 2):
                A(pk('add', r + h, r + h, r + 4 + h))
                A(pk('add', o + h, o + h, r + 8 + h))
            for h in (0, 2):
                A(pk('add', o + h, o + h, r + h))
            A('buffer_store_dwordx4 %s, v10, s[36:39], 0 offen offset:%d', v(o, 4), nb * 64)
        if self.trace:
            tr(13)
            A('s_waitcnt vmcnt(0)')
            tr(14)
            self.tr_store(DBG_OFF)
        A('s_endpgm')

    def compute(self):
        A, N, tr = self.A, self.N, self.tr
        SC1 = self.SC1
        A.label(N + '_comp')
        A('s_cmp_lt_i32 s3, 0')
        A('s_cbranch_scc1 %s_end', N)
        A('v_and_b32 v12, 15, v2')
        A('s_lshl_b32 s44, s19, 6')
        A('s_lshl_b32 s45, s22, 4')
        A('s_add_u32 s44, s44, s45')
        A('v_add_u32 v3, s44, v12')
        A('v_lshlrev_b32 v16, 1, v3')
        A('s_waitcnt lgkmcnt(0)')
        srd(A, 24, PLRE, P * 2)
        srd(A, 32, PLIM, P * 2)
        srd(A, 40, PLDT, P * 2)
        A('buffer_load_ushort v64, v16, s[24:27], 0 offen')
        A('buffer_load_ushort v65, v16, s[32:35], 0 offen')
        A('buffer_load_ushort v66, v16, s[40:43], 0 offen')
        srd(A, 28, PWS, WS_USED)
        srd(A, 36, PWS, G_BYTES)
        self.frag_addrs()
        for i in range(6):
            A('v_mov_b32 %s, %s', v(26 + i), v(20 + i))
        for i in range(144):
            A('v_mov_b32 v%d, 0', ACC + i)
        A('s_mov_b32 s53, 0')
        A('s_mov_b32 s54, 0')
        A('s_waitcnt vmcnt(0)')
        tr(1)
        A('v_lshlrev_b32 v64, 16, v64')
        A('v_lshlrev_b32 v65, 16, v65')
        A('v_lshlrev_b32 v66, 16, v66')
        A('v_mul_f32 v66, 0x%x, v66', f2u(1.4426950408889634))
        A('v_exp_f32 v66, v66')
        A('s_nop 0')
        A('v_cvt_pk_bf16_f32 v66, v66, v66')
        A('v_lshlrev_b32 v66, 16, v66')
        A('v_mul_f32 v6, v66, v64')
        A('v_mul_f32 v7, v66, v65')
        A('v_mul_f32 v6, 0x%x, v6', f2u(1.4426950408889634))
        A('v_mul_f32 v7, 0.15915494, v7')
        A('v_exp_f32 v244, v6')
        A('v_rndne_f32 v245, v7')
        A('v_sub_f32 v245, v7, v245')
        A('v_cos_f32 v8, v245')
        A('v_sin_f32 v9, v245')
        A('s_nop 0')
        A('v_mul_f32 v8, v8, v244')
        A('v_mul_f32 v9, v9, v244')
        A('v_sub_f32 v4, 0, v9')
        self.cpow(18, n_c=36)
        A('v_mul_f32 v244, v64, v64')
        A('v_fmac_f32 v244, v65, v65')
        A('v_rcp_f32 v244, v244')
        A('v_add_f32 v245, -1.0, v8')
        A('v_mul_f32 v10, v245, v64')
        A('v_fmac_f32 v10, v9, v65')
        A('v_mul_f32 v11, v9, v64')
        A('v_fma_f32 v11, -v245, v65, v11')
        A('v_add_f32 v244, v244, v244')
        A('v_mul_f32 v10, v10, v244')
        A('v_mul_f32 v11, v11, v244')
        A('v_mov_b32 v15, %d', T_TAG)

        def ra(rb): return 32 + rb * 4
        def rb_(st, c): return 68 + st * 16 + c * 4
        def breads(st, isq):
            ss = st; r = []
            if isq:
                for m in range(2):
                    for hf in range(2):
                        r.append('ds_read_b64_tr_b16 %s, v28 offset:%d' % (v(rb_(st, m) + 2 * hf, 2), m * 8192 + (32 * ss + 4 * hf) * 128))
                for m in range(2):
                    r.append('ds_read_b128 %s, %s offset:%d' % (v(rb_(st, 2 + m), 4), 'v30' if ss == 0 else 'v31', m * 8192))
            else:
                for m in range(2):
                    for p in range(2):
                        for hf in range(2):
                            r.append('ds_read_b64_tr_b16 %s, %s offset:%d' % (v(rb_(st, 2 * m + p) + 2 * hf, 2), 'v28' if p == 0 else 'v29', m * 8192 + (32 * ss + 4 * hf) * 128))
            return r
        def aread(ss, rb):
            return 'ds_read_b128 %s, %s offset:%d' % (v(ra(rb), 4), 'v26' if ss == 0 else 'v27', rb * 2048)
        def mf(st, isq, rb, c):
            d = v(acc(rb, c), 4)
            if isq and c >= 2:
                return 'v_mfma_f32_16x16x32_bf16 %s, %s, %s, %s' % (d, v(ra(rb), 4), v(rb_(st, c), 4), d)
            return 'v_mfma_f32_16x16x32_bf16 %s, %s, %s, %s' % (d, v(rb_(st, c), 4), v(ra(rb), 4), d)
        def substep(st, isq, nxt, pend, defer=0, pre=(), mid=None):
            q = []
            pre = list(pre)
            bq = breads(1 - st, isq) if nxt else []
            started = (defer == 0)
            if started: q += [(l, 'B%d' % (1 - st)) for l in bq]
            for rb in range(9):
                if rb == defer and defer:
                    for l in pre: A(l)
                    pre = []
                    mid(); pend[:] = []
                    started = True
                    q = q + [(l, 'B%d' % (1 - st)) for l in bq]
                need = [i for i, t in enumerate(pend) if t == 'A%d_%d' % (st, rb) or t == 'B%d' % st]
                if need:
                    n_after = len(pend) - 1 - max(need)
                    if n_after < 15: A('s_waitcnt lgkmcnt(%d)', n_after)
                    del pend[:max(need) + 1]
                for c in range(4):
                    A(mf(st, isq, rb, c))
                    if not started:
                        for _ in range(2):
                            if pre: A(pre.pop(0))
                    if started and q and c < 3:
                        l, t = q.pop(0); A(l); pend.append(t)
                if nxt:
                    q.append((aread(1 - st, rb), 'A%d_%d' % (1 - st, rb)))
                    if started:
                        l, t = q.pop(0); A(l); pend.append(t)
            while q:
                l, t = q.pop(0); A(l); pend.append(t)

        A('s_cmp_eq_u32 s20, 1')
        A('s_cbranch_scc1 %s_q', N)
        for isq in (False, True):
            tag = 'q' if isq else 'p'
            if isq: A.label('%s_q' % N)
            tr(2)
            A('s_setprio 2')
            A('s_barrier')
            for l in breads(0, isq): A(l)
            for rb in range(9): A(aread(0, rb))
            A('s_waitcnt lgkmcnt(0)')
            A.label('%s_loop_%s' % (N, tag))
            def body(pend):
                substep(0, isq, True, pend)
                A('s_add_u32 s54, s54, 1')
                A('s_cmp_eq_u32 s54, %d', NSTG)
                A('s_cbranch_scc1 %s_tail_%s', N, tag)
                tail_pend = list(pend)
                pre = ['s_add_u32 s53, s53, %d' % STAGE, 's_cmp_eq_u32 s53, %d' % (3 * STAGE), 's_cselect_b32 s53, 0, s53']
                pre += ['v_add_u32 %s, s53, %s' % (v(26 + i), v(20 + i)) for i in range(6) if isq and i != 3 or not isq and i < 4]
                def mid():
                    A('s_waitcnt lgkmcnt(0)')
                    A('s_barrier')
                substep(1, isq, True, pend, defer=2, pre=pre, mid=mid)
                return tail_pend
            mark = len(A.lines)
            p0 = []
            body(p0)
            del A.lines[mark:]
            p1 = list(p0)
            tail_pend = body(p1)
            assert p1 == p0
            A('s_branch %s_loop_%s', N, tag)
            A.label('%s_tail_%s' % (N, tag))
            substep(1, isq, False, tail_pend)
            tr(3)
            A('s_barrier')
            tr(4)
            A('ds_read_b32 v252, v15')
            if isq: self.epi_q()
            else: self.epi_p()
            if self.trace:
                tr(8)
                self.tr_store(DBG_OFF + 0x40000)
            A('s_endpgm')

    def cpow(self, dst, n_v=None, n_c=None, t0=244):
        A = self.A
        if n_v is not None:
            A('v_mul_f32 v%d, v%d, v6', t0, n_v)
            A('v_mul_f32 v%d, v%d, v7', t0 + 1, n_v)
        else:
            A('v_mul_f32 v%d, 0x%x, v6', t0, f2u(float(n_c)))
            A('v_mul_f32 v%d, 0x%x, v7', t0 + 1, f2u(float(n_c)))
        A('v_exp_f32 v%d, v%d', t0, t0)
        A('v_fract_f32 v%d, v%d', t0 + 1, t0 + 1)
        A('v_cos_f32 v%d, v%d', dst, t0 + 1)
        A('v_sin_f32 v%d, v%d', dst + 1, t0 + 1)
        A('s_nop 0')
        A('v_mul_f32 v%d, v%d, v%d', dst, dst, t0)
        A('v_mul_f32 v%d, v%d, v%d', dst + 1, dst + 1, t0)

    def ffn_block(self, g, u, sg, su, st, t, out):
        A = self.A
        for h in (0, 2): A(pk('fma', g + h, st, sg + h, g + h, sel='lnn', neg=[1, 0, 0]))
        for h in (0, 2): A(pk('mul', t + h, g + h, g + h))
        for h in (0, 2): A(pk('fma', u + h, st, su + h, u + h, sel='lnn', neg=[1, 0, 0]))
        for h in (0, 2): A(pk('fma', t + h, t + h, st + 2, st, sel='nlh'))
        for h in (0, 2): A(pk('mul', t + h, t + h, g + h))
        for i in range(4): A('v_exp_f32 v%d, v%d', t + i, t + i)
        for h in (0, 2): A(pk('mul', g + h, g + h, u + h))
        for h in (0, 2): A(pk('fma', t + h, t + h, st + 2, st + 2, sel='nhh'))
        for i in range(4): A('v_rcp_f32 v%d, v%d', t + i, t + i)
        A('s_nop 0')
        for h in (0, 2): A(pk('mul', g + h, g + h, t + h))
        A('v_cvt_pk_bf16_f32 v%d, v%d, v%d', out, g, g + 1)
        A('v_cvt_pk_bf16_f32 v%d, v%d, v%d', out + 1, g + 2, g + 3)

    def g_soff(self, dst, rb, ks_s):
        A = self.A
        A('s_add_u32 s44, s6, %d', rb)
        A('s_lshr_b32 s45, s44, 2')
        A('s_mul_i32 s45, s45, %d', KS2)
        A('s_add_u32 s45, s45, %s', ks_s)
        A('s_lshl_b32 s45, s45, 2')
        A('s_and_b32 s44, s44, 3')
        A('s_add_u32 s45, s45, s44')
        A('s_lshl_b32 %s, s45, 10', dst)

    def gflag(self, slot0):
        if not self.fused: return
        A = self.A
        A('s_lshl_b32 s44, s18, 7')
        A('s_lshl_b32 s45, s19, 2')
        A('s_add_u32 s44, s44, s45')
        A('s_add_u32 s44, s44, s22')
        A('s_lshl_b32 s44, s44, 7')
        A('s_add_u32 s44, s44, 0x%x', FG_OFF + 128 * slot0)
        A('v_lshlrev_b32 v1, 24, v2')
        A('buffer_store_dword v252, v1, s[28:31], s44 offen sc1')

    def epi_p(self):
        A = self.A
        A('s_lshl_b32 s44, s22, 8')
        A('s_add_u32 s44, s44, %d', T_CS)
        A('v_lshl_add_u32 v13, v5, 4, s44')
        for c in range(4):
            A('ds_read_b128 %s, v13 offset:%d', v(32 + 4 * c, 4), c * 64)
        A('v_and_b32 v12, 15, v2')
        A('v_lshlrev_b32 v12, 4, v12')
        A('v_add_u32 v12, %d, v12', T_FFN)
        for rb in range(9):
            A('ds_read_b128 %s, v12 offset:%d', v(48 + 4 * rb, 4), rb * 256)
        A('v_lshlrev_b32 v14, 4, v2')
        A('s_mul_i32 s6, s18, 9')
        A('s_lshl_b32 s7, s19, 2')
        A('s_add_u32 s7, s7, s22')
        A('s_add_u32 s7, s7, 20')
        for rb in range(9):
            A('s_waitcnt lgkmcnt(%d)', 8 - rb)
            o = 92 + (rb & 1) * 4
            for p in range(2):
                self.ffn_block(acc(rb, p), acc(rb, 2 + p), 32 + 4 * p, 40 + 4 * p, 48 + 4 * rb, 84 + 4 * p, o + 2 * p)
            self.g_soff('s46', rb, 's7')
            A('buffer_store_dwordx4 %s, v14, s[36:39], s46 offen' + self.SC1, v(o, 4))
        self.tr(7)
        if self.fused or self.trace: A('s_waitcnt vmcnt(0)')
        self.gflag(0)

    def epi_q(self):
        A, N, tr = self.A, self.N, self.tr
        A('v_and_b32 v14, 15, v2')
        A('s_lshl_b32 s44, s22, 8')
        A('s_add_u32 s44, s44, %d', T_CS)
        A('v_lshl_add_u32 v13, v5, 4, s44')
        for c in range(2):
            A('ds_read_b128 %s, v13 offset:%d', v(32 + 4 * c, 4), c * 64)
        A('v_lshrrev_b32 v15, 2, v14')
        A('v_mul_u32_u24 v15, 36, v15')
        A('v_and_b32 v16, 3, v14')
        A('v_add_u32 v15, v15, v16')
        A('v_lshlrev_b32 v12, 4, v15')
        A('v_add_u32 v12, %d, v12', T_FFN)
        for rb in range(9):
            A('ds_read_b128 %s, v12 offset:%d', v(48 + 4 * rb, 4), rb * 64)
        A('s_mul_i32 s44, s18, 144')
        A('v_and_b32 v16, 1, v5')
        A('v_lshl_add_u32 v15, v16, 2, v15')
        A('v_add_u32 v15, s44, v15')
        A('s_lshl_b32 s7, s19, 1')
        A('s_add_u32 s7, s7, s17')
        A('s_add_u32 s7, s7, 40')
        A('s_lshl_b32 s7, s7, 12')
        A('s_lshl_b32 s44, s16, 9')
        A('s_add_u32 s7, s7, s44')
        A('v_lshlrev_b32 v17, 30, v16')
        A('v_lshrrev_b32 v16, 1, v5')
        A('v_lshlrev_b32 v16, 8, v16')
        for rb in range(9):
            A('s_waitcnt lgkmcnt(%d)', 8 - rb)
            o = 92 + ((rb >> 1) & 1) * 4
            self.ffn_block(acc(rb, 0), acc(rb, 1), 32, 36, 48 + 4 * rb, 84, o + 2 * (rb & 1))
            if rb & 1 or rb == 8:
                ad = 40 + ((rb >> 1) & 1)
                A('v_add_u32 v88, %d, v15', 4 * (rb & ~1))
                A('v_lshrrev_b32 v89, 6, v88')
                A('v_mul_u32_u24 v89, %d, v89', KS2 * 4)
                A('v_bfe_u32 v90, v88, 4, 2')
                A('v_add_lshl_u32 v89, v89, v90, 10')
                A('v_and_b32 v90, 15, v88')
                A('v_lshl_add_u32 v89, v90, 4, v89')
                if rb == 8: A('v_add3_u32 v%d, v89, v16, v17', ad)
                else: A('v_add_u32 v%d, v89, v16', ad)
                A('v_permlane16_swap_b32 v%d, v%d', o, o + 2)
                A('v_permlane16_swap_b32 v%d, v%d', o + 1, o + 3)
                A('buffer_store_dwordx4 %s, v%d, s[36:39], s7 offen' + self.SC1, v(o, 4), ad)
        A('s_lshl_b32 s44, s22, 8')
        A('s_add_u32 s44, s44, %d', T_CS + 128)
        A('v_lshl_add_u32 v15, v14, 2, s44')
        A('ds_read2_b32 v[12:13], v15 offset0:0 offset1:16')
        A('v_mul_u32_u24 v15, 144, v5')
        A('v_add_u32 v15, %d, v15', T_M)
        M0, R0 = 26, 62
        for rb in range(9):
            A('ds_read_b128 %s, v15 offset:%d', v(M0 + 4 * rb, 4), rb * 16)
            A('ds_read_b128 %s, v15 offset:%d', v(R0 + 4 * rb, 4), T_R - T_M + rb * 16)
        prev = None
        for rb in range(9):
            n_after = 2 * (8 - rb)
            if n_after < 15: A('s_waitcnt lgkmcnt(%d)', n_after)
            re, im = acc(rb, 2), acc(rb, 3)
            for h in (0, 2):
                A(pk('fma', re + h, M0 + 4 * rb + h, 12, re + h, sel='nln', neg=[1, 0, 0]))
                A(pk('fma', im + h, M0 + 4 * rb + h, 12, im + h, sel='nhn', neg=[1, 0, 0]))
            for h in (0, 2):
                A(pk('mul', re + h, re + h, R0 + 4 * rb + h))
                A(pk('mul', im + h, im + h, R0 + 4 * rb + h))
            for r in range(4):
                if prev is not None:
                    pr, pi = prev
                    A('v_fmac_f32 v%d, v4, v%d', re + r, pi)
                    A('v_fmac_f32 v%d, v9, v%d', im + r, pr)
                    A('v_fmac_f32 v%d, v8, v%d', re + r, pr)
                    A('v_fmac_f32 v%d, v8, v%d', im + r, pi)
                prev = (re + r, im + r)
        A('s_waitcnt vmcnt(0)')
        self.gflag(0)
        A('s_mul_i32 s8, s22, 10240')
        A('s_add_u32 s8, s8, %d', TRB)
        A('v_mov_b32 v16, v%d', prev[0])
        A('v_mov_b32 v17, v%d', prev[1])
        A('v_lshl_add_u32 v15, v14, 5, s8')
        A('v_lshl_add_u32 v20, v5, 3, v15')
        A('ds_write_b64 v20, v[16:17] offset:9216')
        A('s_waitcnt lgkmcnt(0)')
        SQ = 244
        A('ds_read_b128 %s, v15 offset:9216', v(SQ, 4))
        A('ds_read_b128 %s, v15 offset:9232', v(SQ + 4, 4))
        A('v_lshlrev_b32 v21, 4, v3')
        A('s_mul_i32 s9, s18, 10240')
        A('s_add_u32 s9, s9, 0x%x', SC_OFF)
        A('v_mov_b32 v27, v252')
        A('v_mov_b32 v29, v252')
        A('s_waitcnt lgkmcnt(0)')
        def cmad(d, x, add, dstep=1):
            A('v_fma_f32 v%d, v18, v%d, v%d', d, x, add)
            A('v_fma_f32 v%d, v18, v%d, v%d', d + dstep, x + 1, add + 1)
            A('v_fma_f32 v%d, -v19, v%d, v%d', d, x + 1, d)
            A('v_fmac_f32 v%d, v19, v%d', d + dstep, x)
        cmad(22, SQ, SQ + 2)
        cmad(24, 22, SQ + 4)
        cmad(26, 24, SQ + 6, dstep=2)
        A('s_mov_b64 exec, 0xffff')
        A('buffer_store_dwordx4 v[26:29], v21, s[28:31], s9 offen sc1')
        A('s_mov_b64 exec, -1')
        tr(5)
        GA, GD, GW, GT = 26, 32, 60, 68
        A('s_mov_b32 s11, 0x%x', SC_OFF)
        A('v_mov_b32 v30, 0x%x', OOB)
        for i in range(4):
            A('v_add_u32 v31, %d, v5', 4 * i)
            A('v_mul_u32_u24 v%d, 10240, v31', GA + i)
            A('v_add_u32 v%d, v%d, v21', GA + i, GA + i)
            A('v_cmp_gt_u32 vcc, s18, v31')
            A('v_sub_u32 v31, s18, v31')
            A('v_add_u32 v31, -1, v31')
            A('v_cndmask_b32 v%d, v30, v%d, vcc', GA + i, GA + i)
            A('v_cndmask_b32 v%d, 0, v252, vcc', GT + i)
            A('v_max_i32 v31, 0, v31')
            A('v_mul_u32_u24 v31, 144, v31')
            A('v_cvt_f32_u32 v%d, v31', 48 + i)
        def gather():
            for i in range(4):
                A('buffer_load_dwordx4 %s, v%d, s[28:31], s11 offen sc1', v(GD + 4 * i, 4), GA + i)
        gather()
        for i in range(4):
            self.cpow(GW + 2 * i, n_v=48 + i, t0=52)
        for rb in range(9):
            re, im = acc(rb, 2), acc(rb, 3)
            for h in (0, 2):
                A(pk('mul', 52 + h, im + h, 10, sel='nh'))
                A(pk('mul', im + h, im + h, 10, sel='nl', neg=[1, 0]))
            for h in (0, 2):
                A(pk('fma', im + h, re + h, 10, im + h, sel='nhn', neg=[1, 0, 0]))
                A(pk('fma', re + h, re + h, 10, 52 + h, sel='nln', neg=[0, 0, 1]))
        def cmul(dr, di, ar, ai, br, bi):
            A('v_mul_f32 v%d, v%d, v%d', dr, ar, br)
            A('v_mul_f32 v%d, v%d, v%d', di, ar, bi)
            A('v_fma_f32 v%d, -v%d, v%d, v%d', dr, ai, bi, dr)
            A('v_fmac_f32 v%d, v%d, v%d', di, ai, br)
        tr_, ti = acc(0, 0), acc(0, 1)
        cmul(tr_, ti, 10, 11, 8, 9)
        cmul(56, 57, 8, 9, 8, 9)
        cmul(tr_ + 1, ti + 1, tr_, ti, 8, 9)
        cmul(58, 59, 56, 57, 56, 57)
        A(pk('mul', tr_ + 2, tr_, 56, sel='nl'))
        A(pk('mul', ti + 2, tr_, 56, sel='nh'))
        A(pk('fma', tr_ + 2, ti, 56, tr_ + 2, sel='nhn', neg=[1, 0, 0]))
        A(pk('fma', ti + 2, ti, 56, ti + 2, sel='nln'))
        for rb in range(1, 9):
            pr_, pi_ = acc(rb - 1, 0), acc(rb - 1, 1)
            nr, ni = acc(rb, 0), acc(rb, 1)
            for h in (0, 2):
                A(pk('mul', nr + h, pr_ + h, 58, sel='nl'))
                A(pk('mul', ni + h, pr_ + h, 58, sel='nh'))
            for h in (0, 2):
                A(pk('fma', nr + h, pi_ + h, 58, nr + h, sel='nhn', neg=[1, 0, 0]))
                A(pk('fma', ni + h, pi_ + h, 58, ni + h, sel='nln'))
        A('s_waitcnt vmcnt(0)')
        def chk():
            A('v_xor_b32 v52, v%d, v%d', GT, GD + 1)
            for i in range(4):
                for k in (1, 3):
                    if i or k == 3: A('v_bitop3_b32 v52, v52, v%d, v%d bitop3:0xf6', GT + i, GD + 4 * i + k)
            A('v_cmp_ne_u32 vcc, 0, v52')
        self.spin(chk, gather, 'gp')
        tr(6)
        cmul(52, 53, GW, GW + 1, GD, GD + 2)
        for i in range(1, 4):
            w, x = GW + 2 * i, GD + 4 * i
            A('v_fmac_f32 v52, v%d, v%d', w, x)
            A('v_fmac_f32 v53, v%d, v%d', w, x + 2)
            A('v_fma_f32 v52, -v%d, v%d, v52', w + 1, x + 2)
            A('v_fmac_f32 v53, v%d, v%d', w + 1, x)
        for step in (32, 16):
            A('v_mov_b32 v54, v52')
            A('v_mov_b32 v55, v53')
            A('s_nop 1')
            A('v_permlane%d_swap_b32 v52, v54', step)
            A('v_permlane%d_swap_b32 v53, v55', step)
            A('s_nop 1')
            A('v_add_f32 v52, v52, v54')
            A('v_add_f32 v53, v53, v55')
        for qq in range(3):
            cmad(54, 52, SQ + 2 * qq)
            A('v_cmp_lt_u32 vcc, %d, v5', qq)
            A('s_nop 1')
            A('v_cndmask_b32 v52, v52, v54, vcc')
            A('v_cndmask_b32 v53, v53, v55, vcc')
        A('v_mul_u32_u24 v15, 288, v14')
        A('v_mul_u32_u24 v16, 72, v5')
        A('v_add3_u32 v15, v15, v16, s8')
        for rb in range(9):
            re, im = acc(rb, 2), acc(rb, 3)
            tr_, ti = acc(rb, 0), acc(rb, 1)
            for h in (0, 2):
                A(pk('fma', re + h, tr_ + h, 52, re + h, sel='nln'))
                A(pk('fma', im + h, tr_ + h, 52, im + h, sel='nhn', neg=[1, 0, 0]))
            for h in (0, 2):
                A(pk('fma', re + h, ti + h, 52, re + h, sel='nhn', neg=[1, 0, 0]))
                A(pk('fma', im + h, ti + h, 52, im + h, sel='nln', neg=[1, 0, 0]))
            A('v_cvt_pk_bf16_f32 v%d, v%d, v%d', tr_, re, re + 1)
            A('v_cvt_pk_bf16_f32 v%d, v%d, v%d', tr_ + 1, re + 2, re + 3)
            A('v_cvt_pk_bf16_f32 v%d, v%d, v%d', tr_ + 2, im, im + 1)
            A('v_cvt_pk_bf16_f32 v%d, v%d, v%d', tr_ + 3, im + 2, im + 3)
            A('ds_write_b64 v15, %s offset:%d', v(tr_, 2), 8 * rb)
            A('ds_write_b64 v15, %s offset:%d', v(tr_ + 2, 2), 16 * 288 + 8 * rb)
        A('v_lshrrev_b32 v16, 2, v14')
        A('v_lshl_add_u32 v16, v5, 3, v16')
        A('v_mul_u32_u24 v16, 288, v16')
        A('v_and_b32 v17, 3, v14')
        A('v_lshl_add_u32 v16, v17, 3, v16')
        A('v_add_u32 v16, s8, v16')
        A('v_lshlrev_b32 v17, 4, v2')
        A('s_mul_i32 s6, s18, 9')
        A('s_lshl_b32 s7, s19, 2')
        A('s_add_u32 s7, s7, s22')
        A('s_waitcnt lgkmcnt(0)')
        for tb in range(9):
            for hf in range(2):
                A('ds_read_b64_tr_b16 %s, v16 offset:%d', v(56 + 4 * tb + 2 * hf, 2), 4 * 288 * hf + 32 * tb)
        for tb in range(9):
            self.g_soff('s46', tb, 's7')
            n_after = 2 * (8 - tb)
            if n_after < 15: A('s_waitcnt lgkmcnt(%d)', n_after)
            A('buffer_store_dwordx4 %s, v17, s[36:39], s46 offen' + self.SC1, v(56 + 4 * tb, 4))
        tr(7)
        if self.fused or self.trace: A('s_waitcnt vmcnt(0)')
        self.gflag(68)

for gw in range(1024): assert (gw * 3277) >> 16 == gw // 20
for l in range(256): assert (l * 1093) >> 16 == l // 60
for l in range(76): assert (l * 13108) >> 16 == l // 5
for d in range(40): assert (d * 52) >> 8 == d // 5
for y in range(36): assert (y * 43) >> 7 == y // 3
for y in range(128): assert (y * 57) >> 9 == y // 9

def header():
    ref = open('parallel_sum__ssm_conv_s5__geglu_ffn__prompt.s.ref').read().split('\n')
    out = []
    for l in ref:
        if l.startswith('; Override'): break
        out.append(l)
    return out

def build(out, fused=True, trace=False, aslist=True):
    import gen_k2
    A = Asm()
    A.lines += header()
    name = 'parallel_sum__ssm_conv_s5__geglu_ffn__prompt_kernel'
    if aslist or not fused:
        A.lines.append('; @launch kernel=%s grid=(256,1,1) block=(512,1,1) lds=%d' % (name, LDS_F))
    else:
        A.lines.append('; @launch grid=(256,1,1) block=(512,1,1) lds=%d' % LDS_F)
    if not fused:
        A.lines.append('; @launch kernel=k2_kernel grid=(256,1,1) block=(256,1,1) lds=81920')
    A('.amdgcn_target "amdgcn-amd-amdhsa--gfx950"')
    r1 = Gen(A, name, fused=fused, trace=trace).gen()
    if not fused:
        r2 = gen_k2.gen_k2(A, DEPTH=4, stamps=False, exp='X')
    kernel_desc(A, name, r1['vgpr'], r1['sgpr'], r1['accum'])
    if not fused:
        kernel_desc(A, 'k2_kernel', r2['vgpr'], r2['sgpr'], r2['accum'])
    open(out, 'w').write(A.text())

if __name__ == '__main__':
    o = sys.argv[2] if len(sys.argv) > 2 else ''
    build(sys.argv[1], fused='2' not in o, trace='T' in o, aslist='1' not in o)
```

```python
import sys, struct, os
from asmlib import *
from layout import *

STAGE = 51200
NSTG = 10
XL = 3 * STAGE
T_FFN = XL
T_M = XL + 2304
T_R = XL + 2880
T_CS = XL + 3456
T_P2 = XL + 4480
T_WD = XL
T_TAG = XL + 8192
LDS_F = XL + 8208
CAREA = 15360
HB, HAREA = 71680, 20480
OOB = 0x7f000000
EXP = os.environ.get('EXP', '')
NT = ' nt' if 'n' in EXP else ''
LS = '' if 'p' in EXP else ' sc1'
SPIN = 0x20000
def f2u(x): return struct.unpack('<I', struct.pack('<f', x))[0]
C1 = -2.0 * 0.7978845608028654 * 1.4426950408889634
C2 = C1 * 0.044715
PX, PLRE, PLIM, PBRE, PBIM, PCRE, PCIM, PLDT, PDSK, PBX, PWG, PWU, PWD, POUT, PDBG, PWS = [64 + 2 * i for i in range(16)]
ACC = 100
def acc(rb, c, r=0): return ACC + (rb * 4 + c) * 4 + r

def pk(op, d, a_, b_, c_=None, sel=None, neg=None):
    srcs = [a_, b_] + ([c_] if c_ is not None else [])
    n = len(srcs)
    sel = sel or 'n' * n
    lo = [1 if x == 'h' else 0 for x in sel]
    hi = [0 if x == 'l' else 1 for x in sel]
    t = 'v_pk_%s_f32 %s, %s' % (op, v(d, 2), ', '.join(v(x, 2) for x in srcs))
    t += ' op_sel:[%s] op_sel_hi:[%s]' % (','.join(map(str, lo)), ','.join(map(str, hi)))
    if neg and any(neg):
        t += ' neg_lo:[%s] neg_hi:[%s]' % (','.join(map(str, neg)), ','.join(map(str, neg)))
    return t

class Gen:
    def __init__(self, A, name, fused=True, trace=False):
        self.A, self.N, self.fused, self.trace = A, name, fused, trace
        self.SC1 = ' sc1' if fused and 'w' not in EXP else ''

    def tr(self, k):
        if not self.trace: return
        A = self.A
        A('s_memtime s[96:97]')
        A('s_waitcnt lgkmcnt(0)')
        if isinstance(k, tuple):
            A('s_add_u32 m0, %s, %d', k[0], k[1])
            A('v_writelane_b32 v253, s96, m0')
        else:
            A('v_writelane_b32 v253, s96, %d', k)
    def tr_store(self, base):
        if not self.trace: return
        A = self.A
        A('s_memrealtime s[96:97]')
        A('s_waitcnt lgkmcnt(0)')
        A('v_writelane_b32 v253, s96, 31')
        A('v_writelane_b32 v253, s100, 30')
        A('v_writelane_b32 v253, s48, 0')
        A('s_lshl_b32 s44, s2, 2')
        A('s_add_u32 s44, s44, s22')
        A('s_lshl_b32 s44, s44, 8')
        A('s_add_u32 s44, s44, 0x%x', base)
        A('v_lshlrev_b32 v0, 2, v2')
        A('buffer_store_dword v253, v0, s[28:31], s44 offen')

    def spin(self, check, reload, tagname, sleep=2):
        A, N = self.A, self.N
        lp = A.newlabel(N + '_' + tagname); lo = A.newlabel(N + '_' + tagname + 'o')
        A('s_mov_b32 s5, 0')
        A.label(lp)
        check()
        A('s_add_u32 s5, s5, 1')
        A('s_nop 3')
        A('s_cbranch_vccz %s', lo)
        A('s_cmp_ge_u32 s5, 0x%x', SPIN)
        A('s_cbranch_scc1 %s', lo)
        A('s_sleep %d', sleep)
        reload()
        A('s_waitcnt vmcnt(0)')
        A('s_branch %s', lp)
        A.label(lo)

    def frag_addrs(self):
        A = self.A
        A('v_and_b32 v12, 15, v2')
        A('v_bfe_u32 v13, v2, 1, 3')
        A('v_xor_b32 v13, v5, v13')
        A('v_lshlrev_b32 v13, 4, v13')
        A('v_lshl_add_u32 v20, v12, 7, v13')
        A('v_xor_b32 v21, 64, v20')
        A('v_lshrrev_b32 v13, 2, v12')
        A('v_lshl_add_u32 v13, v5, 3, v13')
        A('v_lshlrev_b32 v13, 7, v13')
        A('v_and_b32 v14, 3, v2')
        A('v_lshl_add_u32 v13, v14, 3, v13')
        A('v_bfe_u32 v14, v2, 3, 2')
        A('s_lshl_b32 s44, s16, 1')
        A('s_lshl_b32 s45, s17, 14')
        A('s_cmp_eq_u32 s20, 1')
        A('s_cselect_b32 s44, s22, s44')
        A('s_cselect_b32 s45, 0, s45')
        A('s_add_u32 s45, s45, 18432')
        A('v_xor_b32 v15, s44, v14')
        A('v_lshl_add_u32 v22, v15, 5, v13')
        A('v_add_u32 v22, s45, v22')
        A('v_xor_b32 v23, 32, v22')
        A('s_lshl_b32 s44, s22, 11')
        A('s_add_u32 s44, s44, %d', 18432 + 16384)
        A('v_add_u32 v24, s44, v20')
        A('v_add_u32 v25, s44, v21')

    def row_gather(self, d0, vaddr):
        A = self.A
        for i in range(10):
            A('s_mov_b32 s44, 0x%x', RP_OFF + i * 2304)
            A('buffer_load_dwordx4 %s, v%d, s[28:31], s44 offen sc1', v(d0 + 4 * i, 4), vaddr)
    def tagcheck(self, dst, regs, first=True):
        A = self.A
        for i, r in enumerate(regs):
            if first and i == 0: A('v_xor_b32 v%d, s4, v%d', dst, r)
            else: A('v_bitop3_b32 v%d, v%d, s4, v%d bitop3:0xf6', dst, dst, r)
    def row_math(self, d0, t):
        A = self.A
        for i in range(1, 10):
            A('v_add_f32 v%d, v%d, v%d', d0, d0, d0 + 4 * i)
            A('v_add_f32 v%d, v%d, v%d', d0 + 2, d0 + 2, d0 + 4 * i + 2)
        A('v_mul_f32 v%d, 0x%x, v%d', t, f2u(1.0 / 640), d0)
        A('v_mul_f32 v%d, 0x%x, v%d', t + 1, f2u(1.0 / 640), d0 + 2)
        A('v_fma_f32 v%d, -v%d, v%d, v%d', t + 1, t, t, t + 1)
        A('v_max_f32 v%d, 0, v%d', t + 1, t + 1)
        A('v_cvt_pk_bf16_f32 v%d, v%d, v%d', t + 2, t, t + 1)
        A('v_lshlrev_b32 v%d, 16, v%d', t + 4, t + 2)
        A('v_and_b32 v%d, 0xffff0000, v%d', t + 1, t + 2)
        A('v_add_f32 v%d, 0x%x, v%d', t + 1, f2u(1e-5), t + 1)
        A('v_cvt_pk_bf16_f32 v%d, v%d, v%d', t + 2, t + 1, t + 1)
        A('v_lshlrev_b32 v%d, 16, v%d', t + 1, t + 2)
        A('v_sqrt_f32 v%d, v%d', t + 1, t + 1)
        A('s_nop 0')
        A('v_cvt_pk_bf16_f32 v%d, v%d, v%d', t + 2, t + 1, t + 1)
        A('v_lshlrev_b32 v%d, 16, v%d', t + 1, t + 2)
        A('v_rcp_f32 v%d, v%d', t + 5, t + 1)
        A('s_nop 0')

    def gen(self):
        A, N = self.A, self.N
        kernel_begin(A, N)
        A('s_cmp_ge_u32 s2, 256')
        A('s_cbranch_scc1 %s_end', N)
        A('s_load_dwordx16 s[64:79], s[0:1], 0')
        A('s_load_dwordx16 s[80:95], s[0:1], 64')
        if self.trace:
            A('s_memtime s[48:49]')
            A('s_memrealtime s[100:101]')
            A('v_mov_b32 v253, 0')
        A('v_lshrrev_b32 v1, 6, v0')
        A('v_and_b32 v2, 63, v0')
        A('v_readfirstlane_b32 s21, v1')
        A('s_and_b32 s3, s2, 7')
        A('s_lshl_b32 s3, s3, 5')
        A('s_lshr_b32 s16, s2, 3')
        A('s_add_u32 s3, s3, s16')
        A('s_sub_u32 s3, s3, 1')
        A('s_max_i32 s44, s3, 0')
        A('s_mul_i32 s16, s44, 1093')
        A('s_lshr_b32 s16, s16, 16')
        A('s_mul_i32 s17, s16, 60')
        A('s_sub_u32 s17, s44, s17')
        A('s_lshr_b32 s18, s17, 2')
        A('s_and_b32 s19, s17, 3')
        A('s_lshl_b32 s16, s16, 2')
        A('s_add_u32 s19, s19, s16')
        A('s_sub_u32 s17, s44, 180')
        A('s_mul_i32 s16, s17, 13108')
        A('s_lshr_b32 s16, s16, 16')
        A('s_mul_i32 s20, s16, 5')
        A('s_sub_u32 s20, s17, s20')
        A('s_add_u32 s20, s20, 12')
        A('s_cmp_ge_u32 s44, 180')
        A('s_cselect_b32 s18, s16, s18')
        A('s_cselect_b32 s19, s20, s19')
        A('s_cmp_lt_u32 s19, 10')
        A('s_cselect_b32 s20, 1, 0')
        A('s_and_b32 s22, s21, 3')
        A('s_and_b32 s16, s22, 1')
        A('s_lshr_b32 s17, s22, 1')
        A('v_lshrrev_b32 v5, 4, v2')
        A('s_add_u32 s51, s18, s19')
        A('s_mul_i32 s44, s51, 52')
        A('s_lshr_b32 s44, s44, 8')
        A('s_mul_i32 s45, s44, 5')
        A('s_sub_u32 s51, s51, s45')
        A('s_and_b32 s44, s44, 1')
        A('s_mul_i32 s23, s44, %d', 0 if 'r' in EXP else 5)
        A('s_cmp_lt_u32 s21, 4')
        A('s_cbranch_scc1 %s_comp', N)
        self.helper()
        self.compute()
        A.label('%s_end' % N)
        A('s_endpgm')
        return dict(vgpr=256, sgpr=102, accum=256, lds=LDS_F)

    def dma_groups(self):
        A, N = self.A, self.N
        G = []
        for n in range(5):
            g = []
            if n == 0: g += ['s_add_u32 m0, s60, s61', 's_mov_b32 s63, s58']
            else: g += ['s_add_u32 m0, m0, 4096', 's_add_u32 s63, s63, s55']
            if n == 4:
                lb = A.newlabel(N + '_skA')
                g += ['s_cmp_ge_u32 s22, 2', 's_cbranch_scc1 %s' % lb, 'buffer_load_dwordx4 v18, s[24:27], s63 offen%s lds' % NT, lb + ':']
            else:
                g += ['buffer_load_dwordx4 v18, s[24:27], s63 offen%s lds' % NT]
            G.append(g)
        for i in range(8):
            g = []
            if i == 0: g += ['s_add_u32 m0, s60, s62', 's_mov_b32 s63, s59']
            elif i == 4: g += ['s_add_u32 m0, m0, 4096', 's_add_u32 s63, s63, s56', 's_add_u32 s63, s63, 4096']
            else: g += ['s_add_u32 s63, s63, s56']
            g += ['buffer_load_dwordx4 %s, s[32:35], s63 offen offset:%d%s lds' % ('v10' if i % 2 == 0 else 'v11', (i % 4) * 1024, NT)]
            G.append(g)
        G[-1] += ['s_add_u32 s58, s58, 128', 's_cmp_eq_u32 s58, 1280', 's_cselect_b32 s58, 0, s58', 's_cselect_b32 s63, s50, s57',
                  's_add_u32 s59, s59, s63', 's_add_u32 s60, s60, %d' % STAGE,
                  's_cmp_eq_u32 s60, %d' % (3 * STAGE), 's_cselect_b32 s60, 0, s60']
        return G
    def weave(self, groups, lines, per=None):
        A = self.A
        lines = [l.strip() for l in lines]
        per = per or -(-len(lines) // len(groups))
        uses_scc = lambda l: l.startswith(('s_cselect', 's_cbranch_scc', 's_addc'))
        def scc_live_at(k):
            for l in lines[k:]:
                if uses_scc(l): return True
                if l.startswith('s_') and not l.startswith(('s_mov', 's_mul_i32', 's_nop', 's_waitcnt')): return False
            return False
        k = 0
        for g in groups:
            for l in g: A(l)
            e = min(k + per, len(lines))
            while e < len(lines) and scc_live_at(e): e += 1
            for l in lines[k:e]: A(l)
            k = e
        for l in lines[k:]: A(l)
    def dma(self):
        for g in self.dma_groups():
            for l in g: self.A(l)

    def helper(self):
        A, N, tr = self.A, self.N, self.tr
        A('s_setprio 3')
        A('s_cmp_lt_i32 s3, 0')
        A('s_cbranch_scc1 %s_spare', N)
        A('s_and_b32 s54, s20, s17')
        A('v_lshrrev_b32 v3, 3, v2')
        A('v_and_b32 v4, 7, v2')
        A('v_xor_b32 v6, v4, v5')
        A('v_xor_b32 v7, 4, v6')
        A('v_lshrrev_b32 v12, 5, v2')
        A('v_mul_u32_u24 v12, 36, v12')
        A('v_and_b32 v13, 3, v3')
        A('v_add_u32 v12, v12, v13')
        A('s_mul_i32 s44, s16, 72')
        A('s_lshl_b32 s45, s17, 2')
        A('s_add_u32 s44, s44, s45')
        A('s_lshl_b32 s45, s22, 3')
        A('s_cmp_eq_u32 s20, 1')
        A('s_cselect_b32 s44, s44, s45')
        A('s_cselect_b64 vcc, -1, 0')
        A('s_mov_b32 s45, 40960')
        A('s_cselect_b32 s55, 10240, s45')
        A('s_mul_i32 s45, s18, 144')
        A('s_add_u32 s44, s44, s45')
        A('v_cndmask_b32 v12, v3, v12, vcc')
        A('v_add_u32 v12, s44, v12')
        A('v_mul_u32_u24 v12, 1280, v12')
        A('s_cmp_eq_u32 s16, 1')
        A('s_cselect_b64 vcc, -1, 0')
        A('v_bfe_u32 v8, v2, 4, 1')
        A('v_lshlrev_b32 v8, 1, v8')
        A('v_cndmask_b32 v13, v6, v7, vcc')
        A('v_lshl_add_u32 v18, v13, 4, v12')
        A('v_xor_b32 v8, v4, v8')
        A('v_xor_b32 v9, 4, v8')
        A('v_mul_u32_u24 v12, 1280, v3')
        A('v_mul_u32_u24 v13, 3072, v3')
        A('v_lshl_add_u32 v14, v6, 4, v12')
        A('v_lshl_add_u32 v15, v7, 4, v12')
        A('v_lshl_add_u32 v16, v8, 4, v13')
        A('v_lshl_add_u32 v17, v9, 4, v13')
        A('s_cmp_eq_u32 s54, 1')
        A('s_cselect_b64 vcc, -1, 0')
        A('s_mov_b32 s44, %d', D * F * 2)
        A('s_cselect_b32 s34, %d, s44', P * D * 2)
        A('s_mov_b32 s44, %d', 8 * 3072 - 1024)
        A('s_cselect_b32 s56, %d, s44', 8 * 1280 - 1024)
        A('s_mov_b32 s44, %d', 64 * 3072)
        A('s_cselect_b32 s57, 128, s44')
        A('v_cndmask_b32 v10, v16, v14, vcc')
        A('v_cndmask_b32 v11, v17, v15, vcc')
        A('s_lshl_b32 s44, s19, 1')
        A('s_sub_u32 s44, s44, 10')
        A('s_add_u32 s44, s44, s17')
        A('s_cmp_eq_u32 s20, 1')
        A('s_cselect_b32 s44, s19, s44')
        A('s_lshl_b32 s44, s44, 7')
        A('s_mul_i32 s45, s19, %d', 64 * 1280)
        A('s_cmp_eq_u32 s54, 1')
        A('s_cselect_b32 s59, s45, s44')
        A('s_lshl_b32 s58, s23, 7')
        A('s_mul_i32 s44, s23, s57')
        A('s_add_u32 s59, s59, s44')
        A('s_mul_i32 s50, s57, -9')
        A('s_mov_b32 s60, 0')
        A('s_lshl_b32 s61, s22, 10')
        A('s_lshl_b32 s62, s22, 13')
        A('s_add_u32 s62, s62, 18432')
        A('s_mov_b32 s35, 0x00020000')
        A('s_mov_b32 s26, 0x%x', L * D * 2)
        A('s_mov_b32 s27, 0x00020000')
        A('s_waitcnt lgkmcnt(0)')
        A('s_mov_b32 s24, %s', s(PX))
        A('s_mov_b32 s25, %s', s(PX + 1))
        A('s_cmp_eq_u32 s16, 0')
        A('s_cselect_b64 s[44:45], %s, %s', s(PWG, 2), s(PWU, 2))
        A('s_cselect_b64 s[46:47], %s, %s', s(PBRE, 2), s(PBIM, 2))
        A('s_cmp_eq_u32 s54, 1')
        A('s_cselect_b64 s[32:33], s[46:47], s[44:45]')
        tr(1)
        self.dma()
        mark = len(A.lines)
        self.frag_addrs()
        srd(A, 28, PWS, WS_USED)
        srd(A, 40, PDBG, 256)
        A('s_cmp_ge_u32 s51, 3')
        A('s_cselect_b32 s44, 3, 0')
        A('s_sub_u32 s44, s51, s44')
        A('s_mul_i32 s53, s44, %d', STAGE)
        for i in range(20, 26): A('v_add_u32 v%d, s53, v%d', i, i)
        A('s_lshl_b32 s44, s22, 12')
        A('v_add_u32 v26, s44, v20')
        A('v_add_u32 v27, s44, v21')
        A('v_and_b32 v12, 15, v2')
        A('v_lshrrev_b32 v14, 2, v12')
        A('v_mov_b32 v13, 0x3f803f80')
        for c in range(4):
            A('v_cmp_eq_u32 vcc, %d, v14', c)
            A('s_nop 1')
            for r in range(4):
                A('v_cndmask_b32 v%d, 0, v13, vcc', 28 + 4 * c + r)
        A('v_lshl_add_u32 v127, v14, 4, v12')
        A('v_lshlrev_b32 v127, 2, v127')
        A('s_mul_i32 s6, s18, %d', 10 * 2304)
        A('s_mul_i32 s44, s19, 2304')
        A('s_add_u32 s44, s44, s6')
        A('s_add_u32 s44, s44, 0x%x', RP_OFF)
        A('s_lshl_b32 s45, s22, 9')
        A('s_add_u32 s44, s44, s45')
        A('s_cmp_lt_u32 s19, 10')
        A('s_cselect_b32 s44, s44, 0x%x', OOB)
        A('s_cmp_eq_u32 s22, 3')
        A('s_cselect_b32 s45, 48, 32')
        A('v_mov_b32 v15, 0x%x', OOB)
        A('v_lshl_add_u32 v16, v2, 4, s44')
        A('v_cmp_gt_u32 vcc, s45, v2')
        A('s_mul_i32 s7, s19, %d', 10 * 2048)
        A('s_add_u32 s7, s7, 0x%x', CP_OFF)
        A('v_cndmask_b32 v126, v15, v16, vcc')
        A('s_lshl_b32 s44, s22, 9')
        A('v_lshl_add_u32 v3, v2, 3, s44')
        A('s_lshl_b32 s44, s18, 11')
        A('s_add_u32 s44, s44, s7')
        A('s_cmp_lt_u32 s18, 10')
        A('s_cselect_b32 s44, s44, 0x%x', OOB)
        A('v_add_u32 v128, s44, v3')
        A('v_mov_b32 v6, 0')
        A('v_mov_b32 v7, %d', T_TAG)
        A('s_mov_b32 s54, 0')
        A('s_add_u32 s52, s51, 1')
        A('s_cmp_eq_u32 s51, 4')
        A('s_cselect_b32 s23, 5, 6')
        self.piece_addr()
        self.p2_setup()
        st = A.lines[mark:]; del A.lines[mark:]
        self.weave(self.dma_groups(), st)
        tr(2)
        A('s_waitcnt vmcnt(12)')
        tr(3)
        A('s_setprio %d', int(os.environ.get('HPRIO', '0')))
        A('s_barrier')
        A('buffer_load_dword v8, v6, s[40:43], 0 offen sc1')
        A.label(N + '_hloop')
        tr(('s54', 32))
        A('s_cmp_eq_u32 s54, s23')
        A('s_cbranch_scc1 %s_wflag', N)
        A.label(N + '_hsel')
        A('s_cmp_eq_u32 s54, s51')
        A('s_cbranch_scc1 %s_sread', N)
        A('s_cmp_eq_u32 s54, s52')
        A('s_cbranch_scc1 %s_smfma', N)
        self.dma()
        A.label(N + '_hwait')
        tr(('s54', 48))
        A('s_cmp_lt_u32 s54, 4')
        A('s_cbranch_scc1 %s_early', N)
        A('s_waitcnt vmcnt(12)')
        A.label(N + '_hx')
        A('s_cmp_eq_u32 s54, s52')
        A('s_cbranch_scc1 %s_spub', N)
        A.label(N + '_hbar')
        tr(('s54', 40))
        A('s_add_u32 s54, s54, 1')
        A('s_cmp_lt_u32 s54, 8')
        A('s_waitcnt lgkmcnt(0)')
        A('s_barrier')
        A('s_cbranch_scc1 %s_hloop', N)
        A('s_branch %s_h8', N)
        A.label(N + '_early')
        l1 = A.newlabel(N + '_e'); l2 = A.newlabel(N + '_e'); l3 = A.newlabel(N + '_e')
        A('s_cmp_lg_u32 s54, 0')
        A('s_cbranch_scc1 %s', l1)
        A('s_waitcnt vmcnt(12)')
        def chk():
            A('v_cmp_eq_u32 vcc, 0, v8')
        self.spin(chk, lambda: A('buffer_load_dword v8, v6, s[40:43], 0 offen sc1'), 'tg')
        A('v_readfirstlane_b32 s4, v8')
        A('ds_write_b32 v7, v8')
        self.piece_load()
        A('s_branch %s_hx', N)
        A.label(l1)
        A('s_waitcnt vmcnt(16)')
        A('s_cmp_eq_u32 s54, 1')
        A('s_cbranch_scc1 %s_hx', N)
        A('s_waitcnt vmcnt(12)')
        A('s_cmp_eq_u32 s54, 2')
        A('s_cbranch_scc1 %s_hx', N)
        self.piece_store()
        A('s_branch %s_hx', N)
        A.label(N + '_wflag')
        A('s_waitcnt vmcnt(0)')
        self.piece_flag()
        A('s_branch %s_hsel', N)
        DA, DB = 64, 88
        def adat(k, ss): return DA + (k * 2 + ss) * 4
        def bdat(c, ss): return DB + (c * 2 + ss) * 4
        A.label(N + '_sread')
        lq = A.newlabel(N + '_hq')
        A('s_cmp_eq_u32 s20, 1')
        A('s_cbranch_scc1 %s', lq)
        R = []
        for m in range(2):
            for p in range(2):
                for ss in range(2):
                    for hf in range(2):
                        R.append('ds_read_b64_tr_b16 %s, v%d offset:%d' % (v(bdat(2 * m + p, ss) + 2 * hf, 2), 22 + p, m * 8192 + (32 * ss + 4 * hf) * 128))
        self.weave(self.dma_groups(), R)
        A('s_branch %s_hwait', N)
        A.label(lq)
        R = []
        for m in range(2):
            for ss in range(2):
                for hf in range(2):
                    R.append('ds_read_b64_tr_b16 %s, v22 offset:%d' % (v(bdat(m, ss) + 2 * hf, 2), m * 8192 + (32 * ss + 4 * hf) * 128))
        for m in range(2):
            for ss in range(2):
                R.append('ds_read_b128 %s, v%d offset:%d' % (v(bdat(2 + m, ss), 4), 24 + ss, m * 8192))
        for k in range(2):
            for ss in range(2):
                R.append('ds_read_b128 %s, v%d offset:%d' % (v(adat(k, ss), 4), 26 + ss, k * 2048))
        for ss in range(2):
            R.append('ds_read_b128 %s, v%d offset:16384' % (v(adat(2, ss), 4), 20 + ss))
        self.weave(self.dma_groups(), R)
        A('s_branch %s_hwait', N)
        A.label(N + '_smfma')
        A('s_setprio 3')
        def mm(d, a_, b_, first):
            return 'v_mfma_f32_16x16x32_bf16 %s, %s, %s, %s' % (v(d, 4), v(a_, 4), v(b_, 4), '0' if first else v(d, 4))
        Mc = [mm(44, 28 + 4 * c, bdat(c, ss), c == 0 and ss == 0) for c in range(4) for ss in range(2)]
        Mr = []
        for k in range(3):
            for ss in range(2):
                Mr.append(mm(48, 28 + 4 * k, adat(k, ss), k == 0 and ss == 0))
                Mr.append(mm(52 + 4 * k, adat(k, ss), adat(k, ss), ss == 0))
        lq = A.newlabel(N + '_mq')
        A('s_cmp_eq_u32 s20, 1')
        A('s_cbranch_scc1 %s', lq)
        self.weave(self.dma_groups(), Mc, per=1)
        A('s_branch %s_hwait', N)
        A.label(lq)
        self.weave(self.dma_groups(), Mr + Mc, per=2)
        A('s_branch %s_hwait', N)
        A.label(N + '_spub')
        A('s_setprio 0')
        A('v_mov_b32 v45, s4')
        A('v_mov_b32 v49, s4')
        A('buffer_store_dwordx2 v[44:45], v128, s[28:31], 0 offen sc1')
        A('s_cmp_eq_u32 s20, 0')
        A('s_cbranch_scc1 %s_hbar', N)
        for r in range(1, 4):
            A('s_mov_b32 vcc_lo, 0x%x', 0x11111111 << r)
            A('s_mov_b32 vcc_hi, 0x%x', 0x11111111 << r)
            for k in range(3):
                A('v_cndmask_b32 v%d, v%d, v%d, vcc', 52 + 4 * k, 52 + 4 * k, 52 + 4 * k + r)
        A('ds_bpermute_b32 v50, v127, v52')
        A('ds_bpermute_b32 v53, v127, v56')
        A('ds_bpermute_b32 v54, v127, v60')
        A('v_mov_b32 v51, s4')
        A('s_mov_b32 vcc_lo, 0xffff0000')
        A('s_mov_b32 vcc_hi, 0')
        A('s_waitcnt lgkmcnt(0)')
        A('v_cndmask_b32 v50, v50, v53, vcc')
        A('s_mov_b32 vcc_lo, 0')
        A('s_mov_b32 vcc_hi, -1')
        A('v_cndmask_b32 v50, v50, v54, vcc')
        A('buffer_store_dwordx4 v[48:51], v126, s[28:31], 0 offen sc1')
        A('s_branch %s_hbar', N)

        A.label(N + '_h8')
        tr(4)
        RG, CG = 24, 64
        def gather():
            self.row_gather(RG, 4)
            for i in range(10):
                A('s_add_u32 s44, s7, %d', i * 2048)
                A('buffer_load_dwordx2 %s, v3, s[28:31], s44 offen sc1', v(CG + 2 * i, 2))
        gather()
        if self.fused: self.wflag_load()
        A('s_waitcnt vmcnt(20)')
        A('s_barrier')
        tr(5)
        A('s_waitcnt vmcnt(0)')
        def chk():
            self.tagcheck(100, [RG + 2 * i + 1 for i in range(20)] + [CG + 2 * i + 1 for i in range(10)] + ([self.WF] if self.fused else []))
            A('v_cmp_ne_u32 vcc, 0, v100')
        def regather():
            gather()
            if self.fused: self.wflag_load()
        self.spin(chk, regather, 'sg')
        for i in range(1, 10):
            A('v_add_f32 v%d, v%d, v%d', CG, CG, CG + 2 * i)
        A('v_lshrrev_b32 v100, 1, v3')
        A('v_add_u32 v100, %d, v100', T_CS)
        A('ds_write_b32 v100, v%d', CG)
        T = 66
        self.row_math(RG, T)
        A('v_mov_b32 v72, v70')
        A('v_mul_f32 v75, v67, v67')
        A('v_mul_f32 v73, 0x%x, v71', f2u(C1))
        A('v_mul_f32 v74, v71, v71')
        A('v_mul_f32 v74, v74, v71')
        A('v_mul_f32 v74, 0x%x, v74', f2u(C2))
        A('v_lshlrev_b32 v101, 4, v1')
        A('v_add_u32 v100, %d, v101', T_FFN)
        A('v_lshrrev_b32 v102, 2, v101')
        A('v_add_u32 v102, %d, v102', T_M)
        A('s_mov_b32 exec_hi, 0xffff')
        A('ds_write_b128 v100, v[72:75]')
        A('ds_write_b32 v102, v70')
        A('ds_write_b32 v102, v71 offset:%d', T_R - T_M)
        if not self.fused:
            A('s_mul_i32 s44, s18, 1152')
            A('s_add_u32 s44, s44, 0x%x', ST_OFF)
            A('s_cmp_eq_u32 s19, 0')
            A('s_cselect_b32 s44, s44, 0x%x', OOB)
            A('v_lshrrev_b32 v100, 1, v101')
            A('buffer_store_dwordx2 v[70:71], v100, s[28:31], s44 offen')
        A('s_mov_b32 exec_lo, 0')
        A('s_mov_b32 exec_hi, 0xffff0000')
        A('ds_write_b64 v17, v[70:71]')
        A('s_mov_b64 exec, -1')
        A('s_waitcnt lgkmcnt(0)')
        tr(6)
        A('s_barrier')
        if self.fused:
            A('s_branch %s_p2', N)
        else:
            self.tr_store(DBG_OFF)
            A('s_endpgm')
        A.label(N + '_spare')
        A('s_memrealtime s[44:45]')
        A('s_waitcnt lgkmcnt(0)')
        srd(A, 28, PWS, WS_USED)
        srd(A, 40, PDBG, 256)
        A('v_mov_b32 v6, 0')
        ln = A.newlabel(N + '_nl')
        A('s_cmp_lg_u32 s22, 0')
        A('s_cbranch_scc1 %s', ln)
        A('s_or_b32 s44, s44, 1')
        A('v_mov_b32 v8, s44')
        A('buffer_store_dword v8, v6, s[40:43], 0 offen sc1')
        A.label(ln)
        A('s_setprio 0')
        if self.fused:
            A('v_mov_b32 v8, 0')
            def chk():
                A('v_cmp_eq_u32 vcc, 0, v8')
            self.spin(chk, lambda: A('buffer_load_dword v8, v6, s[40:43], 0 offen sc1'), 'tg')
            A('v_readfirstlane_b32 s4, v8')
        A('s_mov_b32 s6, 0')
        self.piece_addr()
        self.p2_setup()
        self.piece_load()
        A('s_waitcnt vmcnt(0)')
        self.piece_store()
        if self.fused:
            A('s_waitcnt vmcnt(0)')
            self.piece_flag()
            self.wflag_load()
            A('s_waitcnt vmcnt(0)')
            self.wflag_check()
            A('v_mov_b32 v7, %d', T_TAG)
            A('ds_write_b32 v7, v8')
            A('s_waitcnt lgkmcnt(0)')
            A('s_barrier')
            self.row_gather(24, 4)
            A('s_waitcnt vmcnt(0)')
            def chk():
                self.tagcheck(100, [24 + 2 * i + 1 for i in range(20)])
                A('v_cmp_ne_u32 vcc, 0, v100')
            self.spin(chk, lambda: self.row_gather(24, 4), 'sr')
            self.row_math(24, 66)
            A('s_mov_b32 exec_lo, 0')
            A('s_mov_b32 exec_hi, 0xffff0000')
            A('ds_write_b64 v17, v[70:71]')
            A('s_mov_b64 exec, -1')
            A.label(N + '_p2')
            self.phase2('h')
        else:
            A('s_endpgm')

    def piece_addr(self):
        A = self.A
        A('s_lshl_b32 s10, s2, 2')
        A('s_add_u32 s10, s10, s22')
        A('s_mul_i32 s8, s10, 3277')
        A('s_lshr_b32 s8, s8, 16')
        A('s_mul_i32 s9, s8, 20')
        A('s_sub_u32 s9, s10, s9')
        A('v_and_b32 v12, 15, v2')
        A('v_lshrrev_b32 v13, 2, v2')
        A('v_mul_u32_u24 v13, 1280, v13')
        A('v_and_b32 v14, 3, v2')
        A('v_lshl_add_u32 v162, v14, 4, v13')
        A('s_mul_i32 s66, s8, %d', 32 * 1280)
        A('s_lshl_b32 s47, s9, 6')
        A('s_add_u32 s66, s66, s47')
        A('s_add_u32 s67, s66, %d', 16 * 1280 - 1024)
        A('s_lshl_b32 s69, s22, 11')
        A('s_add_u32 s69, s69, %d', T_WD)
        A('s_cmp_lt_u32 s8, 20')
        A('s_cselect_b32 s44, 8, 4')
        A('s_cselect_b32 s45, 4, 16')
        A('v_mul_u32_u24 v13, s44, v5')
        A('v_lshrrev_b32 v15, 2, v12')
        A('v_add_u32 v13, v13, v15')
        A('v_lshlrev_b32 v13, 6, v13')
        A('v_lshl_add_u32 v13, v14, 3, v13')
        A('v_add_u32 v166, s69, v13')
        A('s_lshl_b32 s45, s45, 6')
        A('v_add_u32 v167, s45, v166')
        A('v_mul_u32_u24 v14, 1280, v12')
        A('v_lshl_add_u32 v163, v5, 4, v14')
        A('s_mul_i32 s68, s8, %d', 16 * 1280)
        A('s_add_u32 s68, s68, s47')
        def frag_off(dst, db_s, ks5_s):
            A('s_mul_i32 s44, %s, 52', db_s)
            A('s_lshr_b32 s44, s44, 8')
            A('s_mul_i32 s44, s44, %d', KS2 * 5 - 5)
            A('s_add_u32 s44, s44, %s', db_s)
            A('s_add_u32 s44, s44, %s', ks5_s)
            A('s_lshl_b32 s44, s44, 10')
            A('s_add_u32 %s, s44, 0x%x', dst, W2_OFF)
        A('s_add_u32 s46, s8, 40')
        A('s_mul_i32 s46, s46, 5')
        A('s_lshl_b32 s47, s9, 1')
        frag_off('s11', 's47', 's46')
        A('s_add_u32 s47, s47, 1')
        frag_off('s12', 's47', 's46')
        A('s_cmp_lt_u32 s8, 48')
        A('s_cselect_b32 s11, s11, 0x%x', OOB)
        A('s_cselect_b32 s12, s12, 0x%x', OOB)
        A('s_mul_i32 s46, s9, 10')
        frag_off('s13', 's8', 's46')
        A('s_cmp_lt_u32 s8, 40')
        A('s_cselect_b32 s13, s13, 0x%x', OOB)
        A('v_lshrrev_b32 v15, 1, v5')
        A('v_mul_u32_u24 v15, 4608, v15')
        A('v_lshl_add_u32 v164, v2, 4, v15')
        A('v_lshrrev_b32 v165, 5, v2')
        A('v_lshlrev_b32 v165, 24, v165')
        A('v_lshl_add_u32 v165, v2, 2, v165')
        A('s_lshl_b32 s10, s10, 7')
        A('s_add_u32 s10, s10, 0x%x', FW_OFF)
    def piece_load(self):
        A = self.A
        srd(A, 36, PWD, F * D * 2)
        A('s_mov_b32 m0, s69')
        A('s_nop 0')
        A('buffer_load_dwordx4 v162, s[36:39], s66 offen lds')
        A('buffer_load_dwordx4 v162, s[36:39], s67 offen offset:1024 lds')
        srd(A, 36, PCRE, D * P * 2)
        A('buffer_load_dwordx4 v[154:157], v163, s[36:39], s68 offen')
        srd(A, 36, PCIM, D * P * 2)
        A('buffer_load_dwordx4 v[158:161], v163, s[36:39], s68 offen')
    def piece_store(self):
        A, SC1 = self.A, self.SC1
        for p in range(2):
            for hf in range(2):
                A('ds_read_b64_tr_b16 %s, v%d offset:%d', v(146 + 4 * p + 2 * hf, 2), 166 + hf, 32 * p)
        A('buffer_store_dwordx4 v[154:157], v164, s[28:31], s13 offen' + SC1)
        A('buffer_store_dwordx4 v[158:161], v164, s[28:31], s13 offen offset:512' + SC1)
        A('s_waitcnt lgkmcnt(0)')
        for p in range(2):
            A('buffer_store_dwordx4 %s, v9, s[28:31], s%d offen' + SC1, v(146 + 4 * p, 4), 11 + p)
    def piece_flag(self):
        A = self.A
        if not self.fused: return
        A('buffer_store_dword v8, v165, s[28:31], s10 offen sc1')

    WF = 84
    def wflag_load(self):
        self.A('s_mov_b32 s44, 0x%x', FW_OFF)
        self.A('buffer_load_dword v%d, v16, s[28:31], s44 offen sc1', self.WF)
    def wflag_check(self):
        self.spin(lambda: self.A('v_cmp_ne_u32 vcc, s4, v%d', self.WF), self.wflag_load, 'wf', sleep=8)
    def p2_scalars(self, mt2, nt2):
        A = self.A
        A('s_and_b32 s44, s2, 7')
        A('s_lshr_b32 s45, s2, 3')
        A('s_lshr_b32 s46, s44, 1')
        A('s_lshl_b32 %s, s46, 3', mt2)
        A('s_lshr_b32 s46, s45, 2')
        A('s_add_u32 %s, %s, s46', mt2, mt2)
        A('s_and_b32 s46, s44, 1')
        A('s_lshl_b32 %s, s46, 2', nt2)
        A('s_and_b32 s46, s45, 3')
        A('s_add_u32 %s, %s, s46', nt2, nt2)
        A('s_mul_i32 s46, %s, %d', mt2, KS2)
        A('s_mul_i32 s47, %s, %d', nt2, KS2)
        for g, (mul, add) in enumerate(((5, 40), (7, 60), (10, 0))):
            A('s_mul_i32 s44, s22, %d', mul)
            A('s_add_u32 s44, s44, %d', add)
            A('s_add_u32 s45, s46, s44')
            A('s_lshl_b32 s%d, s45, 12', 84 + g)
            A('s_add_u32 s45, s47, s44')
            A('s_mul_i32 s45, s45, 5120')
            A('s_add_u32 s%d, s45, 0x%x', 70 + g, W2_OFF)
        A('s_lshl_b32 s44, %s, 2', mt2)
        A('s_mul_i32 s45, s44, 57')
        A('s_lshr_b32 s46, s45, 9')
        A('s_add_u32 s44, s44, 3')
        A('s_mul_i32 s45, s44, 57')
        A('s_lshr_b32 s83, s45, 9')
        A('s_sub_u32 s83, s83, s46')
        A('s_lshl_b32 s83, s83, 14')
        A('s_lshl_b32 s46, s46, 14')
        A('s_add_u32 s46, s46, 0x%x', FG_OFF)
        A('s_mul_i32 s44, s22, 1280')
        A('s_add_u32 s78, s46, s44')
        A('s_add_u32 s82, s78, %d', 68 * 128)
        A('s_mul_i32 s44, s22, 896')
        A('s_add_u32 s79, s46, s44')
        A('s_add_u32 s79, s79, %d', 40 * 128)
    def p2_setup(self):
        A = self.A
        self.p2_scalars('s8', 's9')
        A('s_mul_i32 s73, s22, %d', HAREA)
        A('s_add_u32 s73, s73, %d', HB)
        A('v_lshlrev_b32 v9, 4, v2')
        A('v_add_u32 v19, 0x1000, v9')
        A('s_lshl_b32 s44, s8, 2')
        A('s_add_u32 s44, s44, s22')
        A('s_mul_i32 s45, s44, 57')
        A('s_lshr_b32 s45, s45, 9')
        A('s_mul_i32 s46, s45, 9')
        A('s_sub_u32 s46, s44, s46')
        A('s_lshl_b32 s46, s46, 4')
        A('s_mul_i32 s47, s45, %d', 10 * 2304)
        A('v_and_b32 v12, 15, v2')
        A('v_add_u32 v12, s46, v12')
        A('v_min_u32 v1, 35, v2')
        A('s_mul_i32 s44, s22, 36')
        A('v_add_u32 v1, s44, v1')
        A('v_cmp_eq_u32 vcc, 3, v5')
        A('v_mov_b32 v13, s6')
        A('v_mov_b32 v14, s47')
        A('v_cndmask_b32 v12, v1, v12, vcc')
        A('v_cndmask_b32 v13, v13, v14, vcc')
        A('v_mul_u32_u24 v14, 57, v12')
        A('v_lshrrev_b32 v14, 11, v14')
        A('v_mul_u32_u24 v15, 36, v14')
        A('v_sub_u32 v12, v12, v15')
        A('v_and_b32 v15, 3, v12')
        A('v_lshl_add_u32 v15, v14, 2, v15')
        A('v_and_b32 v12, 60, v12')
        A('v_lshl_add_u32 v15, v12, 2, v15')
        A('v_lshl_add_u32 v4, v15, 4, v13')
        A('s_lshl_b32 s44, s22, 7')
        A('s_add_u32 s44, s44, %d', T_P2)
        A('v_and_b32 v12, 15, v2')
        A('v_lshl_add_u32 v17, v12, 3, s44')
        A('v_mul_u32_u24 v12, 43, v2')
        A('v_lshrrev_b32 v12, 7, v12')
        A('v_mul_u32_u24 v13, 3, v12')
        A('v_sub_u32 v13, v2, v13')
        A('s_mul_i32 s44, s22, 5')
        A('s_mul_i32 s45, s22, 7')
        A('s_add_u32 s45, s45, 15')
        A('v_add_u32 v14, s44, v12')
        A('v_add_u32 v15, s45, v12')
        A('v_cmp_gt_u32 vcc, 5, v12')
        A('s_mul_i32 s46, s9, 5')
        A('s_lshr_b32 s47, s46, 1')
        A('v_cndmask_b32 v14, v15, v14, vcc')
        A('v_mul_u32_u24 v14, 20, v14')
        A('v_add3_u32 v14, v14, v13, s47')
        A('v_subrev_u32 v12, 36, v2')
        A('v_min_u32 v12, 24, v12')
        A('v_mul_u32_u24 v13, 52, v12')
        A('v_lshrrev_b32 v13, 8, v13')
        A('v_mul_u32_u24 v13, 15, v13')
        A('s_mul_i32 s46, s46, 20')
        A('s_add_u32 s46, s46, s44')
        A('v_add3_u32 v13, v13, v12, s46')
        A('v_cmp_gt_u32 vcc, 36, v2')
        A('s_nop 1')
        A('v_cndmask_b32 v14, v13, v14, vcc')
        A('v_lshlrev_b32 v16, 7, v14')

    def p2_plan(self, role):
        if role == 'h':
            steps = [(0, k) for k in range(5)] + [(1, k) for k in range(7)]
            src = ['R' if i in (0, 1, 3, 5, 7) else 'L' for i in range(12)]
        else:
            steps = [(2, k) for k in range(10)]
            nr = int(os.environ.get('CNR', '5'))
            src = ['R' if i < nr else 'S' for i in range(10)]
        return steps, src

    def phase2(self, role, before_poll=None):
        A, N, tr = self.A, self.N, self.tr
        H = role == 'h'
        AC = 24
        steps, src = self.p2_plan(role)
        NS = len(steps)
        pool = list(range(104, 252, 4))
        def take(n):
            assert len(pool) >= n
            r = pool[:n]; del pool[:n]; return r
        wf, gf = {}, {}
        def ac(mb, nb): return AC + (mb * 5 + nb) * 4
        q = []
        def wait(tag):
            idx = [i for i, t in enumerate(q) if t == tag]
            if not idx: return
            n = len(q) - 1 - max(idx)
            A('s_waitcnt vmcnt(%d)', min(n, 63))
            del q[:max(idx) + 1]
        lo = [i for i in range(NS) if src[i] == 'L']
        lslot = lambda i: lo.index(i) % 4
        def wload(i):
            g, k = steps[i]
            wf[i] = take(5)
            A('s_add_u32 s44, s%d, %d', 70 + g, k * 5120)
            for nb in range(5):
                if nb < 4: A('buffer_load_dwordx4 %s, v9, s[28:31], s44 offen offset:%d' + LS, v(wf[i][nb], 4), nb * 1024)
                else: A('buffer_load_dwordx4 %s, v19, s[28:31], s44 offen' + LS, v(wf[i][nb], 4))
                q.append('W%d' % i)
        def wdma(i):
            g, k = steps[i]
            A('s_add_u32 m0, s73, %d', lslot(i) * 5120)
            A('s_add_u32 s44, s%d, %d', 70 + g, k * 5120)
            for nb in range(4):
                A('buffer_load_dwordx4 v9, s[28:31], s44 offen offset:%d' + LS + ' lds', nb * 1024)
            A('s_add_u32 m0, m0, 4096')
            A('s_nop 0')
            A('buffer_load_dwordx4 v19, s[28:31], s44 offen' + LS + ' lds')
            q.extend(['W%d' % i] * 5)
        def gload(i):
            g, k = steps[i]
            gf[i] = take(4)
            A('s_add_u32 s45, s%d, %d', 84 + g, k * 4096)
            for mb in range(4):
                A('buffer_load_dwordx4 %s, v%d, s[28:31], s45 offen' + LS, v(gf[i][mb], 4), 12 + mb)
                q.append('G%d' % i)
        if not H:
            A('v_lshlrev_b32 v9, 4, v2')
            A('v_add_u32 v19, 0x1000, v9')
        FA = int(os.environ.get('FLAGAT', '2'))
        for n, i in enumerate([i for i in range(NS) if src[i] == 'R']):
            if before_poll and n == FA: before_poll(len(q))
            wload(i)
        for i in lo[:4]: wdma(i)
        if H: A('s_setprio 3')
        else: A('v_readfirstlane_b32 s4, v252')
        for mb in range(4):
            A('s_add_u32 s44, s22, %d', mb)
            A('s_and_b32 s44, s44, 3')
            A('s_lshl_b32 s44, s44, 10')
            A('v_add_u32 v%d, s44, v9', 12 + mb)
        A('v_and_b32 v3, 15, v2')
        A('v_and_b32 v6, 1, v5')
        A('v_mul_u32_u24 v6, s83, v6')
        A('v_min_u32 v7, 9, v3')
        A('v_lshl_add_u32 v16, v7, 7, v6')
        mt2, nt2 = ('s8', 's9') if H else ('s12', 's13')
        if H:
            A('v_min_u32 v7, 6, v3')
            A('v_lshl_add_u32 v18, v7, 7, v6')
            A('v_add_u32 v11, s73, v9')
            srd(A, 24, PX, L * D * 2)
            srd(A, 32, PDSK, D * 2)
        else:
            A('s_mul_i32 s44, s22, %d', CAREA)
            A('v_add_u32 v11, s44, v9')
            srd(A, 24, POUT, L * D * 4)
        A('s_lshl_b32 s44, %s, 6', mt2)
        A('s_lshl_b32 s45, s22, 4')
        A('s_add_u32 s44, s44, s45')
        A('v_add_u32 v3, s44, v3')
        A('s_mul_i32 s45, %s, 80', nt2)
        A('v_lshl_add_u32 v6, v5, 2, s45')
        A('v_mul_u32_u24 v7, 640, v3')
        A('v_add_u32 v7, v7, v6')
        if H:
            A('v_lshlrev_b32 v8, 1, v7')
            A('v_lshlrev_b32 v6, 1, v6')
        else:
            A('v_lshlrev_b32 v10, 2, v7')
        fb = (78, 79, 82)
        def fload(g):
            return lambda: A('buffer_load_dword v22, v%d, s[28:31], s%d offen sc1', 18 if g == 1 else 16, fb[g])
        fchk = lambda: A('v_cmp_ne_u32 vcc, s4, v22')
        SL = int(os.environ.get('SLEEP', '3'))
        E = 7 if H else 9
        def unpk(d, s0, s1):
            A('v_lshlrev_b32 v%d, 16, v%d', d, s0)
            A('v_and_b32 v%d, 0xffff0000, v%d', d + 1, s0)
            A('v_lshlrev_b32 v%d, 16, v%d', d + 2, s1)
            A('v_and_b32 v%d, 0xffff0000, v%d', d + 3, s1)
        if H:
            XR, DR, t = 64, 74, 84
            for nb in range(5):
                A('buffer_load_dwordx2 %s, v8, s[24:27], 0 offen offset:%d', v(XR + 2 * nb, 2), nb * 32)
            for nb in range(5):
                A('buffer_load_dwordx2 %s, v6, s[32:35], 0 offen offset:%d', v(DR + 2 * nb, 2), nb * 32)
            A('ds_read_b64 v[20:21], v17')
            A('s_setprio 0')
            tr(E)
            A('s_waitcnt vmcnt(0) lgkmcnt(0)')
            fload(0)()
            def rnd():
                A('v_cvt_pk_bf16_f32 v%d, v%d, v%d', t + 4, t, t + 1)
                A('v_cvt_pk_bf16_f32 v%d, v%d, v%d', t + 5, t + 2, t + 3)
                unpk(t, t + 4, t + 5)
            for nb in range(5):
                o = ac(0, nb)
                unpk(o, XR + 2 * nb, XR + 2 * nb + 1)
                for h in (0, 2): A(pk('add', t + h, o + h, 20, sel='nl', neg=[0, 1]))
                rnd()
                for h in (0, 2): A(pk('mul', t + h, t + h, 20, sel='nh'))
                rnd()
                unpk(t + 8, DR + 2 * nb, DR + 2 * nb + 1)
                for h in (0, 2): A(pk('mul', t + h, t + h, t + 8 + h))
                rnd()
                for h in (0, 2): A(pk('add', o + h, o + h, t + h))
            A('s_setprio 3')
        else:
            fload(2)()
            tr(E)
        A('s_waitcnt vmcnt(0)')
        q[:] = []
        tr(E + 1)
        self.spin(fchk, fload(steps[0][0]), 'g0', sleep=SL)
        tr(E + 2)
        A('s_setprio %d', int(os.environ.get('P2PRIO', '1')) if H else 2)
        gnext = 0
        wnext = src.count('R') if not H else NS
        gate = {5: 1} if H else {}
        gate_at = int(os.environ.get('GATE1', '2'))
        def fill(i):
            nonlocal gnext, wnext
            if i + 2 < NS and src[i + 2] == 'L': wf[i + 2] = take(5)
            while True:
                wantw = wnext < NS and (wnext <= gnext + 1 or gnext >= NS)
                if wantw and len(pool) >= 5:
                    wload(wnext); wnext += 1; continue
                if wantw and wnext <= gnext: break
                if gnext < NS and len(pool) >= 4:
                    if gnext in gate:
                        if i < gate_at: break
                        g = gate.pop(gnext)
                        wait('F')
                        self.spin(fchk, fload(g), 'g1', sleep=SL)
                        tr(E + 3)
                    gload(gnext); gnext += 1; continue
                break
        fill(-1)
        if H:
            fload(1)(); q.append('F')
        for i in range(NS):
            if src[i] != 'L': wait('W%d' % i)
            wait('G%d' % i)
            if src[i] == 'L': A('s_waitcnt lgkmcnt(0)')
            mf = []
            for mb in range(4):
                for nb in range(5):
                    c = v(ac(mb, nb), 4) if (i or (H and mb == 0)) else '0'
                    mf.append('v_mfma_f32_16x16x32_bf16 %s, %s, %s, %s' % (v(ac(mb, nb), 4), v(wf[i][nb], 4), v(gf[i][mb], 4), c))
            for l in mf[:4]: A(l)
            if src[i] == 'L' and lo.index(i) + 4 < len(lo): wdma(lo[lo.index(i) + 4])
            for l in mf[4:8]: A(l)
            if i + 1 < NS and src[i + 1] == 'L':
                wait('W%d' % (i + 1))
                for nb in range(5):
                    A('ds_read_b128 %s, v11 offset:%d', v(wf[i + 1][nb], 4), lslot(i + 1) * 5120 + nb * 1024)
            for l in mf[8:]: A(l)
            pool.extend(wf[i] + gf[i])
            fill(i)
        tr(E + 4)
        if H:
            A('s_nop 7')
            for mb in range(4):
                for nb in range(5):
                    A('ds_write_b128 v11, %s offset:%d', v(ac(mb, nb), 4), (mb * 5 + nb) * 1024)
            A('s_waitcnt lgkmcnt(0)')
            if self.trace:
                tr(E + 5)
                self.tr_store(DBG_OFF)
            A('s_endpgm')
            return
        for mb in range(1, 4):
            A('s_sub_u32 s44, s22, %d', mb)
            A('s_and_b32 s44, s44, 3')
            A('s_mul_i32 s44, s44, %d', CAREA)
            A('s_add_u32 s44, s44, %d', (mb - 1) * 5120)
            A('v_add_u32 v%d, s44, v9', 11 + mb)
        for mb in range(1, 4):
            for nb in range(5):
                A('ds_write_b128 v11, %s offset:%d', v(ac(mb, nb), 4), ((mb - 1) * 5 + nb) * 1024)
        for mb in range(4):
            A('s_sub_u32 s44, s22, %d', mb)
            A('s_and_b32 s44, s44, 3')
            A('s_mul_i32 s44, s44, %d', HAREA)
            A('s_add_u32 s44, s44, %d', HB + mb * 5120)
            A('v_add_u32 v%d, s44, v9', 15 + mb)
        A('s_waitcnt lgkmcnt(0)')
        A('s_barrier')
        tr(E + 5)
        RD = 104
        for nb in range(5):
            for p in range(7):
                A('ds_read_b128 %s, v%d offset:%d', v(RD + (nb * 7 + p) * 4, 4), 12 + p, nb * 1024)
        for nb in range(5):
            n = 7 * (4 - nb)
            if n < 15: A('s_waitcnt lgkmcnt(%d)', n)
            o = ac(0, nb); r = RD + nb * 28
            for h in (0, 2):
                A(pk('add', o + h, o + h, r + h))
                for p in (4, 12, 20): A(pk('add', r + p + h, r + p + h, r + p + 4 + h))
            for h in (0, 2):
                A(pk('add', o + h, o + h, r + 4 + h))
                A(pk('add', r + 12 + h, r + 12 + h, r + 20 + h))
            for h in (0, 2):
                A(pk('add', o + h, o + h, r + 12 + h))
            A('buffer_store_dwordx4 %s, v10, s[24:27], 0 offen offset:%d', v(o, 4), nb * 64)
        if self.trace:
            tr(E + 6)
            A('s_waitcnt vmcnt(0)')
            tr(E + 7)
            self.tr_store(DBG_OFF + 0x40000)
        A('s_endpgm')

    def compute(self):
        A, N, tr = self.A, self.N, self.tr
        SC1 = self.SC1
        A.label(N + '_comp')
        A('v_and_b32 v12, 15, v2')
        A('s_lshl_b32 s44, s19, 6')
        A('s_lshl_b32 s45, s22, 4')
        A('s_add_u32 s44, s44, s45')
        A('v_add_u32 v3, s44, v12')
        A('v_lshlrev_b32 v16, 1, v3')
        A('s_waitcnt lgkmcnt(0)')
        srd(A, 24, PLRE, P * 2)
        srd(A, 32, PLIM, P * 2)
        srd(A, 40, PLDT, P * 2)
        A('buffer_load_ushort v64, v16, s[24:27], 0 offen')
        A('buffer_load_ushort v65, v16, s[32:35], 0 offen')
        A('buffer_load_ushort v66, v16, s[40:43], 0 offen')
        if 'A' in EXP:
            A('s_mov_b64 s[56:57], %s', s(PX, 2))
            A('s_mov_b32 s58, %d', L * D * 2)
            A('s_mov_b32 s60, s2')
            for lim, p, nb in ((80, PWG, D * F * 2), (140, PWU, D * F * 2), (200, PBRE, P * D * 2), (225, PBIM, P * D * 2)):
                A('s_sub_u32 s44, s2, %d', lim)
                A('s_cmp_ge_u32 s2, %d', lim)
                A('s_cselect_b64 s[56:57], %s, s[56:57]', s(p, 2))
                A('s_cselect_b32 s58, %d, s58', nb)
                A('s_cselect_b32 s60, s44, s60')
            A('s_mov_b32 s59, 0x00020000')
            A('s_lshl_b32 s60, s60, 15')
            A('v_lshlrev_b32 v248, 7, v0')
            A('buffer_load_dword v249, v248, s[56:59], s60 offen')
        TS0 = int(os.environ.get('TS0', '2'))
        A('s_mov_b64 s[56:57], %s', s(PX, 2))
        A('s_mov_b32 s58, %d', L * D * 2)
        A('s_mov_b32 s59, s2')
        A('s_mov_b32 s60, 32')
        A('s_mov_b32 s61, 0')
        for lim, p, nb, half, kn in ((64, PWG, D * F * 2, 24, 1), (112, PWU, D * F * 2, 24, 1), (160, PBRE, P * D * 2, 10, 0), (180, PBIM, P * D * 2, 10, 0), (200, PBIM, 0, 10, 0)):
            A('s_sub_u32 s44, s2, %d', lim)
            A('s_cmp_ge_u32 s2, %d', lim)
            A('s_cselect_b64 s[56:57], %s, s[56:57]', s(p, 2))
            A('s_cselect_b32 s58, %d, s58', nb)
            A('s_cselect_b32 s59, s44, s59')
            A('s_cselect_b32 s60, %d, s60', half)
            A('s_cselect_b32 s61, %d, s61', kn)
        A('s_add_u32 s62, s22, %d', TS0)
        A('s_sub_u32 s44, s59, s60')
        A('s_add_u32 s45, s62, 5')
        A('s_cmp_ge_u32 s59, s60')
        A('s_cselect_b32 s59, s44, s59')
        A('s_cselect_b32 s62, s45, s62')
        A('s_cmp_gt_u32 s22, %d', 4 - TS0)
        A('s_cselect_b32 s58, 0, s58')
        A('s_lshl_b32 s59, s59, 6')
        A('v_add_u32 v32, s59, v2')
        A('s_lshl_b32 s44, s62, 7')
        A('s_mul_i32 s45, s62, %d', 64 * 3072)
        A('s_cmp_eq_u32 s61, 1')
        A('s_cselect_b32 s63, s45, s44')
        A('s_movk_i32 s44, 1280')
        A('s_cselect_b32 s44, 128, s44')
        A('v_mul_u32_u24 v246, s44, v32')
        A('s_mov_b32 s59, 0x00020000')
        srd(A, 28, PWS, WS_USED)
        srd(A, 36, PWS, G_BYTES)
        if self.fused: self.p2_scalars('s12', 's13')
        A('s_cmp_lt_i32 s3, 0')
        A('s_cbranch_scc1 %s', N + ('_cspare' if self.fused else '_end'))
        self.frag_addrs()
        for i in range(6):
            A('v_mov_b32 %s, %s', v(26 + i), v(20 + i))
        for i in range(144):
            A('v_mov_b32 v%d, 0', ACC + i)
        A('s_mov_b32 s53, 0')
        A('s_mov_b32 s54, 0')
        A('s_waitcnt vmcnt(%d)', 1 if 'A' in EXP else 0)
        tr(1)
        A('v_lshlrev_b32 v64, 16, v64')
        A('v_lshlrev_b32 v65, 16, v65')
        A('v_lshlrev_b32 v66, 16, v66')
        A('v_mul_f32 v66, 0x%x, v66', f2u(1.4426950408889634))
        A('v_exp_f32 v66, v66')
        A('s_nop 0')
        A('v_cvt_pk_bf16_f32 v66, v66, v66')
        A('v_lshlrev_b32 v66, 16, v66')
        A('v_mul_f32 v6, v66, v64')
        A('v_mul_f32 v7, v66, v65')
        A('v_mul_f32 v6, 0x%x, v6', f2u(1.4426950408889634))
        A('v_mul_f32 v7, 0.15915494, v7')
        A('v_exp_f32 v244, v6')
        A('v_rndne_f32 v245, v7')
        A('v_sub_f32 v245, v7, v245')
        A('v_cos_f32 v8, v245')
        A('v_sin_f32 v9, v245')
        A('s_nop 0')
        A('v_mul_f32 v8, v8, v244')
        A('v_mul_f32 v9, v9, v244')
        A('v_sub_f32 v4, 0, v9')
        self.cpow(18, n_c=36)
        A('v_mul_f32 v244, v64, v64')
        A('v_fmac_f32 v244, v65, v65')
        A('v_rcp_f32 v244, v244')
        A('v_add_f32 v245, -1.0, v8')
        A('v_mul_f32 v10, v245, v64')
        A('v_fmac_f32 v10, v9, v65')
        A('v_mul_f32 v11, v9, v64')
        A('v_fma_f32 v11, -v245, v65, v11')
        A('v_add_f32 v244, v244, v244')
        A('v_mul_f32 v10, v10, v244')
        A('v_mul_f32 v11, v11, v244')
        A('v_mov_b32 v15, %d', T_TAG)

        def ra(rb): return 32 + rb * 4
        def rb_(st, c): return 68 + st * 16 + c * 4
        def breads(st, isq):
            ss = st; r = []
            if isq:
                for m in range(2):
                    for hf in range(2):
                        r.append('ds_read_b64_tr_b16 %s, v28 offset:%d' % (v(rb_(st, m) + 2 * hf, 2), m * 8192 + (32 * ss + 4 * hf) * 128))
                for m in range(2):
                    r.append('ds_read_b128 %s, %s offset:%d' % (v(rb_(st, 2 + m), 4), 'v30' if ss == 0 else 'v31', m * 8192))
            else:
                for m in range(2):
                    for p in range(2):
                        for hf in range(2):
                            r.append('ds_read_b64_tr_b16 %s, %s offset:%d' % (v(rb_(st, 2 * m + p) + 2 * hf, 2), 'v28' if p == 0 else 'v29', m * 8192 + (32 * ss + 4 * hf) * 128))
            return r
        def aread(ss, rb):
            return 'ds_read_b128 %s, %s offset:%d' % (v(ra(rb), 4), 'v26' if ss == 0 else 'v27', rb * 2048)
        def mf(st, isq, rb, c):
            d = v(acc(rb, c), 4)
            if isq and c >= 2:
                return 'v_mfma_f32_16x16x32_bf16 %s, %s, %s, %s' % (d, v(ra(rb), 4), v(rb_(st, c), 4), d)
            return 'v_mfma_f32_16x16x32_bf16 %s, %s, %s, %s' % (d, v(rb_(st, c), 4), v(ra(rb), 4), d)
        def substep(st, isq, nxt, pend, defer=0, pre=(), mid=None):
            q = []
            pre = list(pre)
            bq = breads(1 - st, isq) if nxt else []
            started = (defer == 0)
            if started: q += [(l, 'B%d' % (1 - st)) for l in bq]
            for rb in range(9):
                if rb == defer and defer:
                    for l in pre: A(l)
                    pre = []
                    mid(); pend[:] = []
                    started = True
                    q = q + [(l, 'B%d' % (1 - st)) for l in bq]
                need = [i for i, t in enumerate(pend) if t == 'A%d_%d' % (st, rb) or t == 'B%d' % st]
                if need:
                    n_after = len(pend) - 1 - max(need)
                    if n_after < 15: A('s_waitcnt lgkmcnt(%d)', n_after)
                    del pend[:max(need) + 1]
                for c in range(4):
                    A(mf(st, isq, rb, c))
                    if not started:
                        for _ in range(2):
                            if pre: A(pre.pop(0))
                    if started and q and c < 3:
                        l, t = q.pop(0); A(l); pend.append(t)
                if nxt:
                    q.append((aread(1 - st, rb), 'A%d_%d' % (1 - st, rb)))
                    if started:
                        l, t = q.pop(0); A(l); pend.append(t)
            while q:
                l, t = q.pop(0); A(l); pend.append(t)

        A('s_cmp_eq_u32 s20, 1')
        A('s_cbranch_scc1 %s_q', N)
        for isq in (False, True):
            tag = 'q' if isq else 'p'
            if isq: A.label('%s_q' % N)
            tr(2)
            TW = int(os.environ.get('TW', '1'))
            touch = 'buffer_load_dword v247, v246, s[56:59], s63 offen'
            if 'T' not in EXP:
                lt = A.newlabel(N + '_t'); lu = A.newlabel(N + '_t')
                A('s_cmp_ge_u32 s22, %d', TW)
                A('s_cbranch_scc1 %s', lt)
                A(touch)
                A.label(lt)
            A('s_setprio 2')
            A('s_barrier')
            if 'T' not in EXP:
                A('s_cbranch_scc0 %s', lu)
                A(touch)
                A.label(lu)
            for l in breads(0, isq): A(l)
            for rb in range(9): A(aread(0, rb))
            A('s_waitcnt lgkmcnt(0)')
            A.label('%s_loop_%s' % (N, tag))
            def body(pend):
                substep(0, isq, True, pend)
                A('s_add_u32 s54, s54, 1')
                A('s_cmp_eq_u32 s54, %d', NSTG)
                A('s_cbranch_scc1 %s_tail_%s', N, tag)
                tail_pend = list(pend)
                pre = ['s_add_u32 s53, s53, %d' % STAGE, 's_cmp_eq_u32 s53, %d' % (3 * STAGE), 's_cselect_b32 s53, 0, s53']
                pre += ['v_add_u32 %s, s53, %s' % (v(26 + i), v(20 + i)) for i in range(6) if isq and i != 3 or not isq and i < 4]
                def mid():
                    A('s_waitcnt lgkmcnt(0)')
                    A('s_barrier')
                substep(1, isq, True, pend, defer=2, pre=pre, mid=mid)
                return tail_pend
            mark = len(A.lines)
            p0 = []
            body(p0)
            del A.lines[mark:]
            p1 = list(p0)
            tail_pend = body(p1)
            assert p1 == p0
            A('s_branch %s_loop_%s', N, tag)
            A.label('%s_tail_%s' % (N, tag))
            substep(1, isq, False, tail_pend)
            tr(3)
            A('s_barrier')
            tr(4)
            A('ds_read_b32 v252, v15')
            if isq: self.epi_q()
            else: self.epi_p()
            if self.fused:
                A('s_mov_b32 s14, %d', FG_OFF + 128 * (68 if isq else 0))
                if not isq: A('s_branch %s_cp2', N)
            else:
                if self.trace:
                    A('s_waitcnt vmcnt(0)')
                    tr(8)
                    self.tr_store(DBG_OFF + 0x40000)
                A('s_endpgm')
        if self.fused:
            A.label(N + '_cp2')
            def flag(nloads):
                A('s_waitcnt vmcnt(%d)', nloads)
                tr(8)
                self.gflag('s14')
            self.phase2('c', before_poll=flag)
            A.label(N + '_cspare')
            A('v_mov_b32 v15, %d', T_TAG)
            A('s_waitcnt vmcnt(0)')
            A('s_barrier')
            A('ds_read_b32 v252, v15')
            A('s_mov_b32 s14, 0x%x', OOB)
            A('s_waitcnt lgkmcnt(0)')
            A('s_branch %s_cp2', N)

    def cpow(self, dst, n_v=None, n_c=None, t0=244):
        A = self.A
        if n_v is not None:
            A('v_mul_f32 v%d, v%d, v6', t0, n_v)
            A('v_mul_f32 v%d, v%d, v7', t0 + 1, n_v)
        else:
            A('v_mul_f32 v%d, 0x%x, v6', t0, f2u(float(n_c)))
            A('v_mul_f32 v%d, 0x%x, v7', t0 + 1, f2u(float(n_c)))
        A('v_exp_f32 v%d, v%d', t0, t0)
        A('v_fract_f32 v%d, v%d', t0 + 1, t0 + 1)
        A('v_cos_f32 v%d, v%d', dst, t0 + 1)
        A('v_sin_f32 v%d, v%d', dst + 1, t0 + 1)
        A('s_nop 0')
        A('v_mul_f32 v%d, v%d, v%d', dst, dst, t0)
        A('v_mul_f32 v%d, v%d, v%d', dst + 1, dst + 1, t0)

    def ffn_block(self, g, u, sg, su, st, t, out):
        A = self.A
        for h in (0, 2): A(pk('fma', g + h, st, sg + h, g + h, sel='lnn', neg=[1, 0, 0]))
        for h in (0, 2): A(pk('mul', t + h, g + h, g + h))
        for h in (0, 2): A(pk('fma', u + h, st, su + h, u + h, sel='lnn', neg=[1, 0, 0]))
        for h in (0, 2): A(pk('fma', t + h, t + h, st + 2, st, sel='nlh'))
        for h in (0, 2): A(pk('mul', t + h, t + h, g + h))
        for i in range(4): A('v_exp_f32 v%d, v%d', t + i, t + i)
        for h in (0, 2): A(pk('mul', g + h, g + h, u + h))
        for h in (0, 2): A(pk('fma', t + h, t + h, st + 2, st + 2, sel='nhh'))
        for i in range(4): A('v_rcp_f32 v%d, v%d', t + i, t + i)
        A('s_nop 0')
        for h in (0, 2): A(pk('mul', g + h, g + h, t + h))
        A('v_cvt_pk_bf16_f32 v%d, v%d, v%d', out, g, g + 1)
        A('v_cvt_pk_bf16_f32 v%d, v%d, v%d', out + 1, g + 2, g + 3)

    def g_soff(self, dst, rb, ks_s):
        A = self.A
        A('s_add_u32 s44, s6, %d', rb)
        A('s_lshr_b32 s45, s44, 2')
        A('s_mul_i32 s45, s45, %d', KS2)
        A('s_add_u32 s45, s45, %s', ks_s)
        A('s_lshl_b32 s45, s45, 2')
        A('s_and_b32 s44, s44, 3')
        A('s_add_u32 s45, s45, s44')
        A('s_lshl_b32 %s, s45, 10', dst)

    def gflag(self, slot0):
        if not self.fused: return
        A = self.A
        A('s_lshl_b32 s44, s18, 7')
        A('s_lshl_b32 s45, s19, 2')
        A('s_add_u32 s44, s44, s45')
        A('s_add_u32 s44, s44, s22')
        A('s_lshl_b32 s44, s44, 7')
        A('s_add_u32 s44, s44, %s', slot0 if isinstance(slot0, str) else '0x%x' % (FG_OFF + 128 * slot0))
        A('v_lshlrev_b32 v1, 2, v2')
        A('s_mov_b32 exec_hi, 0')
        A('buffer_store_dword v252, v1, s[28:31], s44 offen sc1')
        A('s_mov_b32 exec_hi, -1')

    def epi_p(self):
        A = self.A
        A('s_lshl_b32 s44, s22, 8')
        A('s_add_u32 s44, s44, %d', T_CS)
        A('v_lshl_add_u32 v13, v5, 4, s44')
        for c in range(4):
            A('ds_read_b128 %s, v13 offset:%d', v(32 + 4 * c, 4), c * 64)
        A('v_and_b32 v12, 15, v2')
        A('v_lshlrev_b32 v12, 4, v12')
        A('v_add_u32 v12, %d, v12', T_FFN)
        for rb in range(9):
            A('ds_read_b128 %s, v12 offset:%d', v(48 + 4 * rb, 4), rb * 256)
        A('v_lshlrev_b32 v14, 4, v2')
        A('s_mul_i32 s6, s18, 9')
        A('s_lshl_b32 s7, s19, 2')
        A('s_add_u32 s7, s7, s22')
        A('s_add_u32 s7, s7, 20')
        for rb in range(9):
            A('s_waitcnt lgkmcnt(%d)', 8 - rb)
            o = 92 + (rb & 1) * 4
            for p in range(2):
                self.ffn_block(acc(rb, p), acc(rb, 2 + p), 32 + 4 * p, 40 + 4 * p, 48 + 4 * rb, 84 + 4 * p, o + 2 * p)
            self.g_soff('s46', rb, 's7')
            A('buffer_store_dwordx4 %s, v14, s[36:39], s46 offen' + self.SC1, v(o, 4))
        self.tr(7)

    def epi_q(self):
        A, N, tr = self.A, self.N, self.tr
        A('v_and_b32 v14, 15, v2')
        A('s_lshl_b32 s44, s22, 8')
        A('s_add_u32 s44, s44, %d', T_CS + 128)
        A('v_lshl_add_u32 v15, v14, 2, s44')
        A('ds_read2_b32 v[12:13], v15 offset0:0 offset1:16')
        A('v_mul_u32_u24 v15, 144, v5')
        A('v_add_u32 v15, %d, v15', T_M)
        M0, R0 = 26, 62
        for rb in range(9):
            A('ds_read_b128 %s, v15 offset:%d', v(M0 + 4 * rb, 4), rb * 16)
            A('ds_read_b128 %s, v15 offset:%d', v(R0 + 4 * rb, 4), T_R - T_M + rb * 16)
        prev = None
        for rb in range(9):
            n_after = 2 * (8 - rb)
            if n_after < 15: A('s_waitcnt lgkmcnt(%d)', n_after)
            re, im = acc(rb, 2), acc(rb, 3)
            for h in (0, 2):
                A(pk('fma', re + h, M0 + 4 * rb + h, 12, re + h, sel='nln', neg=[1, 0, 0]))
                A(pk('fma', im + h, M0 + 4 * rb + h, 12, im + h, sel='nhn', neg=[1, 0, 0]))
            for h in (0, 2):
                A(pk('mul', re + h, re + h, R0 + 4 * rb + h))
                A(pk('mul', im + h, im + h, R0 + 4 * rb + h))
            for r in range(4):
                if prev is not None:
                    pr, pi = prev
                    A('v_fmac_f32 v%d, v4, v%d', re + r, pi)
                    A('v_fmac_f32 v%d, v9, v%d', im + r, pr)
                    A('v_fmac_f32 v%d, v8, v%d', re + r, pr)
                    A('v_fmac_f32 v%d, v8, v%d', im + r, pi)
                prev = (re + r, im + r)
        A('s_mul_i32 s8, s22, %d', CAREA)
        A('v_mov_b32 v16, v%d', prev[0])
        A('v_mov_b32 v17, v%d', prev[1])
        A('v_lshl_add_u32 v15, v14, 5, s8')
        A('v_lshl_add_u32 v20, v5, 3, v15')
        A('ds_write_b64 v20, v[16:17] offset:9216')
        A('s_waitcnt lgkmcnt(0)')
        SQ = 244
        A('ds_read_b128 %s, v15 offset:9216', v(SQ, 4))
        A('ds_read_b128 %s, v15 offset:9232', v(SQ + 4, 4))
        A('v_lshlrev_b32 v21, 4, v3')
        A('s_mul_i32 s9, s18, 10240')
        A('s_add_u32 s9, s9, 0x%x', SC_OFF)
        A('v_mov_b32 v27, v252')
        A('v_mov_b32 v29, v252')
        A('s_waitcnt lgkmcnt(0)')
        def cmad(d, x, add, dstep=1):
            A('v_fma_f32 v%d, v18, v%d, v%d', d, x, add)
            A('v_fma_f32 v%d, v18, v%d, v%d', d + dstep, x + 1, add + 1)
            A('v_fma_f32 v%d, -v19, v%d, v%d', d, x + 1, d)
            A('v_fmac_f32 v%d, v19, v%d', d + dstep, x)
        cmad(22, SQ, SQ + 2)
        cmad(24, 22, SQ + 4)
        cmad(26, 24, SQ + 6, dstep=2)
        A('s_mov_b64 exec, 0xffff')
        A('buffer_store_dwordx4 v[26:29], v21, s[28:31], s9 offen sc1')
        A('s_mov_b64 exec, -1')
        tr(5)
        A('s_lshl_b32 s44, s22, 8')
        A('s_add_u32 s44, s44, %d', T_CS)
        A('v_lshl_add_u32 v13, v5, 4, s44')
        for c in range(2):
            A('ds_read_b128 %s, v13 offset:%d', v(32 + 4 * c, 4), c * 64)
        A('v_lshrrev_b32 v15, 2, v14')
        A('v_mul_u32_u24 v15, 36, v15')
        A('v_and_b32 v16, 3, v14')
        A('v_add_u32 v15, v15, v16')
        A('v_lshlrev_b32 v12, 4, v15')
        A('v_add_u32 v12, %d, v12', T_FFN)
        for rb in range(9):
            A('ds_read_b128 %s, v12 offset:%d', v(48 + 4 * rb, 4), rb * 64)
        A('s_mul_i32 s44, s18, 144')
        A('v_and_b32 v16, 1, v5')
        A('v_lshl_add_u32 v15, v16, 2, v15')
        A('v_add_u32 v15, s44, v15')
        A('s_lshl_b32 s7, s19, 1')
        A('s_add_u32 s7, s7, s17')
        A('s_add_u32 s7, s7, 40')
        A('s_lshl_b32 s7, s7, 12')
        A('s_lshl_b32 s44, s16, 9')
        A('s_add_u32 s7, s7, s44')
        A('v_lshlrev_b32 v17, 30, v16')
        A('v_lshrrev_b32 v16, 1, v5')
        A('v_lshlrev_b32 v16, 8, v16')
        for rb in range(9):
            A('s_waitcnt lgkmcnt(%d)', 8 - rb)
            o = 92 + ((rb >> 1) & 1) * 4
            self.ffn_block(acc(rb, 0), acc(rb, 1), 32, 36, 48 + 4 * rb, 84, o + 2 * (rb & 1))
            if rb & 1 or rb == 8:
                ad = 40 + ((rb >> 1) & 1)
                A('v_add_u32 v88, %d, v15', 4 * (rb & ~1))
                A('v_lshrrev_b32 v89, 6, v88')
                A('v_mul_u32_u24 v89, %d, v89', KS2 * 4)
                A('v_bfe_u32 v90, v88, 4, 2')
                A('v_add_lshl_u32 v89, v89, v90, 10')
                A('v_and_b32 v90, 15, v88')
                A('v_lshl_add_u32 v89, v90, 4, v89')
                if rb == 8: A('v_add3_u32 v%d, v89, v16, v17', ad)
                else: A('v_add_u32 v%d, v89, v16', ad)
                A('v_permlane16_swap_b32 v%d, v%d', o, o + 2)
                A('v_permlane16_swap_b32 v%d, v%d', o + 1, o + 3)
                A('buffer_store_dwordx4 %s, v%d, s[36:39], s7 offen' + self.SC1, v(o, 4), ad)
        GA, GD, GW, GT = 26, 32, 60, 68
        A('s_mov_b32 s11, 0x%x', SC_OFF)
        A('v_mov_b32 v30, 0x%x', OOB)
        for i in range(4):
            A('v_add_u32 v31, %d, v5', 4 * i)
            A('v_mul_u32_u24 v%d, 10240, v31', GA + i)
            A('v_add_u32 v%d, v%d, v21', GA + i, GA + i)
            A('v_cmp_gt_u32 vcc, s18, v31')
            A('v_sub_u32 v31, s18, v31')
            A('v_add_u32 v31, -1, v31')
            A('v_cndmask_b32 v%d, v30, v%d, vcc', GA + i, GA + i)
            A('v_cndmask_b32 v%d, 0, v252, vcc', GT + i)
            A('v_max_i32 v31, 0, v31')
            A('v_mul_u32_u24 v31, 144, v31')
            A('v_cvt_f32_u32 v%d, v31', 48 + i)
        def gather():
            for i in range(4):
                A('buffer_load_dwordx4 %s, v%d, s[28:31], s11 offen sc1', v(GD + 4 * i, 4), GA + i)
        gather()
        for i in range(4):
            self.cpow(GW + 2 * i, n_v=48 + i, t0=52)
        for rb in range(9):
            re, im = acc(rb, 2), acc(rb, 3)
            for h in (0, 2):
                A(pk('mul', 52 + h, im + h, 10, sel='nh'))
                A(pk('mul', im + h, im + h, 10, sel='nl', neg=[1, 0]))
            for h in (0, 2):
                A(pk('fma', im + h, re + h, 10, im + h, sel='nhn', neg=[1, 0, 0]))
                A(pk('fma', re + h, re + h, 10, 52 + h, sel='nln', neg=[0, 0, 1]))
        def cmul(dr, di, ar, ai, br, bi):
            A('v_mul_f32 v%d, v%d, v%d', dr, ar, br)
            A('v_mul_f32 v%d, v%d, v%d', di, ar, bi)
            A('v_fma_f32 v%d, -v%d, v%d, v%d', dr, ai, bi, dr)
            A('v_fmac_f32 v%d, v%d, v%d', di, ai, br)
        tr_, ti = acc(0, 0), acc(0, 1)
        cmul(tr_, ti, 10, 11, 8, 9)
        cmul(56, 57, 8, 9, 8, 9)
        cmul(tr_ + 1, ti + 1, tr_, ti, 8, 9)
        cmul(58, 59, 56, 57, 56, 57)
        A(pk('mul', tr_ + 2, tr_, 56, sel='nl'))
        A(pk('mul', ti + 2, tr_, 56, sel='nh'))
        A(pk('fma', tr_ + 2, ti, 56, tr_ + 2, sel='nhn', neg=[1, 0, 0]))
        A(pk('fma', ti + 2, ti, 56, ti + 2, sel='nln'))
        for rb in range(1, 9):
            pr_, pi_ = acc(rb - 1, 0), acc(rb - 1, 1)
            nr, ni = acc(rb, 0), acc(rb, 1)
            for h in (0, 2):
                A(pk('mul', nr + h, pr_ + h, 58, sel='nl'))
                A(pk('mul', ni + h, pr_ + h, 58, sel='nh'))
            for h in (0, 2):
                A(pk('fma', nr + h, pi_ + h, 58, nr + h, sel='nhn', neg=[1, 0, 0]))
                A(pk('fma', ni + h, pi_ + h, 58, ni + h, sel='nln'))
        A('s_waitcnt vmcnt(0)')
        self.gflag(0)
        def chk():
            A('v_xor_b32 v52, v%d, v%d', GT, GD + 1)
            for i in range(4):
                for k in (1, 3):
                    if i or k == 3: A('v_bitop3_b32 v52, v52, v%d, v%d bitop3:0xf6', GT + i, GD + 4 * i + k)
            A('v_cmp_ne_u32 vcc, 0, v52')
        self.spin(chk, gather, 'gp')
        tr(6)
        cmul(52, 53, GW, GW + 1, GD, GD + 2)
        for i in range(1, 4):
            w, x = GW + 2 * i, GD + 4 * i
            A('v_fmac_f32 v52, v%d, v%d', w, x)
            A('v_fmac_f32 v53, v%d, v%d', w, x + 2)
            A('v_fma_f32 v52, -v%d, v%d, v52', w + 1, x + 2)
            A('v_fmac_f32 v53, v%d, v%d', w + 1, x)
        for step in (32, 16):
            A('v_mov_b32 v54, v52')
            A('v_mov_b32 v55, v53')
            A('s_nop 1')
            A('v_permlane%d_swap_b32 v52, v54', step)
            A('v_permlane%d_swap_b32 v53, v55', step)
            A('s_nop 1')
            A('v_add_f32 v52, v52, v54')
            A('v_add_f32 v53, v53, v55')
        for qq in range(3):
            cmad(54, 52, SQ + 2 * qq)
            A('v_cmp_lt_u32 vcc, %d, v5', qq)
            A('s_nop 1')
            A('v_cndmask_b32 v52, v52, v54, vcc')
            A('v_cndmask_b32 v53, v53, v55, vcc')
        A('v_mul_u32_u24 v15, 288, v14')
        A('v_mul_u32_u24 v16, 72, v5')
        A('v_add3_u32 v15, v15, v16, s8')
        for rb in range(9):
            re, im = acc(rb, 2), acc(rb, 3)
            tr_, ti = acc(rb, 0), acc(rb, 1)
            for h in (0, 2):
                A(pk('fma', re + h, tr_ + h, 52, re + h, sel='nln'))
                A(pk('fma', im + h, tr_ + h, 52, im + h, sel='nhn', neg=[1, 0, 0]))
            for h in (0, 2):
                A(pk('fma', re + h, ti + h, 52, re + h, sel='nhn', neg=[1, 0, 0]))
                A(pk('fma', im + h, ti + h, 52, im + h, sel='nln', neg=[1, 0, 0]))
            A('v_cvt_pk_bf16_f32 v%d, v%d, v%d', tr_, re, re + 1)
            A('v_cvt_pk_bf16_f32 v%d, v%d, v%d', tr_ + 1, re + 2, re + 3)
            A('v_cvt_pk_bf16_f32 v%d, v%d, v%d', tr_ + 2, im, im + 1)
            A('v_cvt_pk_bf16_f32 v%d, v%d, v%d', tr_ + 3, im + 2, im + 3)
            A('ds_write_b64 v15, %s offset:%d', v(tr_, 2), 8 * rb)
            A('ds_write_b64 v15, %s offset:%d', v(tr_ + 2, 2), 16 * 288 + 8 * rb)
        A('v_lshrrev_b32 v16, 2, v14')
        A('v_lshl_add_u32 v16, v5, 3, v16')
        A('v_mul_u32_u24 v16, 288, v16')
        A('v_and_b32 v17, 3, v14')
        A('v_lshl_add_u32 v16, v17, 3, v16')
        A('v_add_u32 v16, s8, v16')
        A('v_lshlrev_b32 v17, 4, v2')
        A('s_mul_i32 s6, s18, 9')
        A('s_lshl_b32 s7, s19, 2')
        A('s_add_u32 s7, s7, s22')
        A('s_waitcnt lgkmcnt(0)')
        for tb in range(9):
            for hf in range(2):
                A('ds_read_b64_tr_b16 %s, v16 offset:%d', v(56 + 4 * tb + 2 * hf, 2), 4 * 288 * hf + 32 * tb)
        for tb in range(9):
            self.g_soff('s46', tb, 's7')
            n_after = 2 * (8 - tb)
            if n_after < 15: A('s_waitcnt lgkmcnt(%d)', n_after)
            A('buffer_store_dwordx4 %s, v17, s[36:39], s46 offen' + self.SC1, v(56 + 4 * tb, 4))
        tr(7)

for gw in range(1024): assert (gw * 3277) >> 16 == gw // 20
for l in range(256): assert (l * 1093) >> 16 == l // 60
for l in range(76): assert (l * 13108) >> 16 == l // 5
for d in range(40): assert (d * 52) >> 8 == d // 5
for y in range(36): assert (y * 43) >> 7 == y // 3
for y in range(144): assert (y * 57) >> 11 == y // 36
for y in range(128): assert (y * 57) >> 9 == y // 9

def header():
    ref = open('parallel_sum__ssm_conv_s5__geglu_ffn__prompt.s.ref').read().split('\n')
    out = []
    for l in ref:
        if l.startswith('; Override'): break
        out.append(l)
    return out

def build(out, fused=True, trace=False, aslist=True):
    import gen_k2
    A = Asm()
    A.lines += header()
    name = 'parallel_sum__ssm_conv_s5__geglu_ffn__prompt_kernel'
    if aslist or not fused:
        A.lines.append('; @launch kernel=%s grid=(256,1,1) block=(512,1,1) lds=%d' % (name, LDS_F))
    else:
        A.lines.append('; @launch grid=(256,1,1) block=(512,1,1) lds=%d' % LDS_F)
    if not fused:
        A.lines.append('; @launch kernel=k2_kernel grid=(256,1,1) block=(256,1,1) lds=81920')
    A('.amdgcn_target "amdgcn-amd-amdhsa--gfx950"')
    r1 = Gen(A, name, fused=fused, trace=trace).gen()
    if not fused:
        r2 = gen_k2.gen_k2(A, DEPTH=4, stamps=False, exp='X')
    kernel_desc(A, name, r1['vgpr'], r1['sgpr'], r1['accum'])
    if not fused:
        kernel_desc(A, 'k2_kernel', r2['vgpr'], r2['sgpr'], r2['accum'])
    open(out, 'w').write(A.text())

if __name__ == '__main__':
    o = sys.argv[2] if len(sys.argv) > 2 else ''
    build(sys.argv[1], fused='2' not in o, trace='T' in o, aslist='1' not in o)
```
